```python
import torch

def _softmax(x, axis=-1):
    return torch.softmax(x, dim=axis)
def _gelu(x):
    return torch.nn.functional.gelu(x, approximate="tanh")
def _silu(x):
    return torch.nn.functional.silu(x)
def _sigmoid(x):
    return torch.sigmoid(x)
def _layernorm(x, axis=-1, eps=1e-5):
    m = x.mean(dim=axis, keepdim=True)
    v = x.var(dim=axis, keepdim=True, unbiased=False)
    return (x - m) / torch.sqrt(v + eps)
def _scatter_add(tgt, idx, src, axis=0):
    return tgt.clone().index_add_(axis, idx, src)
def _segment_sum(src, seg, n):
    out = torch.zeros((n,) + src.shape[1:], dtype=src.dtype)
    return out.index_add_(0, seg, src)
def _pad(x, pw):
    flat = tuple(v for pair in reversed(pw) for v in pair)
    return torch.nn.functional.pad(x, flat)

kernel_name = 'gated_mix__gqa_block_cached__compressed_kv_cla__decode'

def setup_inputs():

    _w = (lambda a: (lambda t: t.to(torch.bfloat16) if t.is_floating_point() else t)(torch.as_tensor(a)))
    def _A_setup():
        B, Sq, D = 2, 1, 576
        Hq, Hkv, Sk, Dh = 32, 16, 4096, 128
        assert Hq % Hkv == 0, (Hq, Hkv)
        return {
            "x": _w((lambda *s: torch.randn(*s, dtype=torch.bfloat16) * 0.05)(B, Sq, D)),
            "k_cache": _w((lambda *s: torch.randn(*s, dtype=torch.bfloat16) * 6.4)(B, Hkv, Sk, Dh)),
            "v_cache": _w((lambda *s: torch.randn(*s, dtype=torch.bfloat16) * 0.8)(B, Hkv, Sk, Dh)),
            "wq": _w((lambda *s: torch.randn(*s, dtype=torch.bfloat16) * 6.4)(D, Hq * Dh) * (D ** -0.5)),
            "wo": _w((lambda *s: torch.randn(*s, dtype=torch.bfloat16) * 0.8)(Hq * Dh, D) * ((Hq * Dh) ** -0.5)),
        }
    _A_in = _A_setup()

    def _B_setup():
        B, H, Sq, Sk, D, M = 2, 32, 1, 4096, 128, 576
        Dc = 4 * D
        return {
            "x": _w((lambda *s: torch.randn(*s, dtype=torch.bfloat16) * 0.05)(B, Sq, M)),
            "c_kv": _w((lambda *s: torch.randn(*s, dtype=torch.bfloat16) * 0.8)(B, Sk, Dc)),
            "w_q": _w((lambda *s: torch.randn(*s, dtype=torch.bfloat16) * 6.4)(M, H, D) * (M ** -0.5)),
            "w_uk": _w((lambda *s: torch.randn(*s, dtype=torch.bfloat16) * 6.4)(Dc, H, D) * (Dc ** -0.5)),
            "w_uv": _w((lambda *s: torch.randn(*s, dtype=torch.bfloat16) * 0.8)(Dc, H, D) * (Dc ** -0.5)),
            "w_o": _w((lambda *s: torch.randn(*s, dtype=torch.bfloat16) * 0.8)(H, D, M) * ((H * D) ** -0.5)),
        }
    _B_in = _B_setup()

    return {
        "A_x": _A_in["x"],
        "A_k_cache": _A_in["k_cache"],
        "A_v_cache": _A_in["v_cache"],
        "A_wq": _A_in["wq"],
        "A_wo": _A_in["wo"],
        "B_x": _B_in["x"],
        "B_c_kv": _B_in["c_kv"],
        "B_w_q": _B_in["w_q"],
        "B_w_uk": _B_in["w_uk"],
        "B_w_uv": _B_in["w_uv"],
        "B_w_o": _B_in["w_o"],
        "gate_w": _w((lambda *s: torch.randn(*s, dtype=torch.bfloat16) * 0.05)(576) * 16.0),
    }

def reference(A_x, A_k_cache, A_v_cache, A_wq, A_wo, B_x, B_c_kv, B_w_q, B_w_uk, B_w_uv, B_w_o, gate_w):
    def _A_ref(x, k_cache, v_cache, wq, wo):
        B, Sq, D = x.shape
        Hq, Dh = 32, 128
        Hkv = k_cache.shape[1]
        rep = Hq // Hkv
        q = (lambda x, *d: x.permute(*d))((x @ wq).reshape(B, Sq, Hq, Dh), 0, 2, 1, 3)
        k = (lambda x, n, axis: torch.repeat_interleave(x, n, dim=axis))(k_cache, rep, axis=1)
        v = (lambda x, n, axis: torch.repeat_interleave(x, n, dim=axis))(v_cache, rep, axis=1)
        scores = torch.einsum("bhqd,bhkd->bhqk", q, k) * (Dh ** -0.5)
        p = _softmax(scores, axis=-1)
        o = torch.einsum("bhqk,bhkd->bhqd", p, v)
        return (lambda x, *d: x.permute(*d))(o, 0, 2, 1, 3).reshape(B, Sq, Hq * Dh) @ wo

    def _B_ref(x, c_kv, w_q, w_uk, w_uv, w_o):
        B, Sq, M = x.shape[0], x.shape[1], x.shape[2]
        Sk = c_kv.shape[1]
        H, D = w_q.shape[1], w_q.shape[2]
        q = torch.einsum("bqm,mhd->bhqd", x, w_q)
        k = torch.einsum("bkc,chd->bhkd", c_kv, w_uk)
        v = torch.einsum("bkc,chd->bhkd", c_kv, w_uv)
        scores = torch.einsum("bhqd,bhkd->bhqk", q, k) * (D ** -0.5)
        off = Sk - Sq
        qi = torch.arange(Sq)[:, None]
        kj = torch.arange(Sk)[None, :]
        cmask = kj <= (qi + off)
        scores = torch.where(cmask[None, None], scores, -1e9)
        p = _softmax(scores, axis=-1)
        ctx = torch.einsum("bhqk,bhkd->bhqd", p, v)
        return torch.einsum("bhqd,hdm->bqm", ctx, w_o)

    x = A_x
    g = _sigmoid((x * gate_w).sum(-1, keepdims=True))
    a = _A_ref(x, A_k_cache, A_v_cache, A_wq, A_wo)
    b = _B_ref(x, B_c_kv, B_w_q, B_w_uk, B_w_uv, B_w_o)
    return g * a + (1 - g) * b
```

```python
import sys, struct

HEADER = open('gated_mix__gqa_block_cached__compressed_kv_cla__decode.s.ref').read().split('; Override')[0]

QP   = 0x000000
QABS = 0x040000
AP   = 0x080000
AML  = 0x0C0000
BML  = 0x0D0000
CTXP = 0x100000
OUTP = 0x180000
BP   = 0x800000
WS_SIZE = 268435456

CSC = 0.08838834764831845 * 1.4426950408889634
def f32hex(x): return '0x%08x' % struct.unpack('<I', struct.pack('<f', x))[0]

out = []
import re
def e(s):
    m = re.search(r'offset:(\d+)', s)
    if m and s.startswith('buffer_'): assert int(m.group(1)) < 4096, s
    if m and s.startswith('ds_') and 'swizzle' not in s: assert int(m.group(1)) < 65536, s
    out.append('  ' + s)
def lab(s): out.append(s + ':')

KA = dict(A_x=0, A_k=8, A_v=16, A_wq=24, A_wo=32, B_x=40, B_ckv=48, B_wq=56, B_wuk=64, B_wuv=72, B_wo=80, gate=88, out=96, dbg=104, ws=112)

def srd(s, plo, nbytes, off=0):
    if off:
        e(f's_add_u32 s{s}, s{plo}, {off}')
        e(f's_addc_u32 s{s+1}, s{plo+1}, 0')
        e(f's_and_b32 s{s+1}, s{s+1}, 0xffff')
    else:
        e(f's_mov_b32 s{s}, s{plo}')
        e(f's_and_b32 s{s+1}, s{plo+1}, 0xffff')
    e(f's_mov_b32 s{s+2}, {nbytes}')
    e(f's_mov_b32 s{s+3}, 0x20000')

def kstart(name):
    out.append(f'.globl {name}')
    out.append('.p2align 8')
    out.append(f'.type {name},@function')
    lab(name)

kernels = []

def unpack(dst_lo, dst_hi, src):
    e(f'v_lshlrev_b32 v{dst_lo}, 16, v{src}')
    e(f'v_and_b32 v{dst_hi}, 0xffff0000, v{src}')

def lanevars():
    e('v_lshrrev_b32 v1, 6, v0')
    e('v_and_b32 v2, 63, v0')
    e('v_lshrrev_b32 v3, 4, v2')
    e('v_and_b32 v4, 15, v2')

def row_reduce(regs, op='add'):
    for sh in (8, 4, 2, 1):
        for r in regs:
            e(f'v_{op}_f32_dpp v{r}, v{r}, v{r} row_ror:{sh} row_mask:0xf bank_mask:0xf')
        if len(regs) < 3: e('s_nop 1')

def k1():
    name = 'qproj_kernel'
    kstart(name)
    e('s_cmp_ge_u32 s2, 256')
    e('s_cbranch_scc1 L_k1_end')
    e(f's_load_dwordx2 s[4:5], s[0:1], {KA["A_x"]}')
    e(f's_load_dwordx2 s[6:7], s[0:1], {KA["A_wq"]}')
    e(f's_load_dwordx2 s[8:9], s[0:1], {KA["A_x"]}')
    e(f's_load_dwordx2 s[10:11], s[0:1], {KA["B_wq"]}')
    e(f's_load_dwordx2 s[12:13], s[0:1], {KA["ws"]}')
    e('s_lshr_b32 s14, s2, 7')
    e('s_bfe_u32 s15, s2, 0x50002')
    e('s_and_b32 s16, s2, 3')
    e('s_waitcnt lgkmcnt(0)')
    e('s_cmp_eq_u32 s14, 0')
    e('s_cselect_b32 s4, s4, s8')
    e('s_cselect_b32 s5, s5, s9')
    e('s_cselect_b32 s6, s6, s10')
    e('s_cselect_b32 s7, s7, s11')
    srd(20, 4, 2304)
    srd(24, 6, 4718592)
    srd(28, 12, 0x40000, QP)
    lanevars()
    e('s_mul_i32 s17, s16, 144')
    e('v_mul_u32_u24 v5, 36, v1')
    e('v_add3_u32 v5, v5, v3, s17')
    e('v_lshlrev_b32 v6, 13, v5')
    e('s_lshl_b32 s18, s15, 8')
    e('v_lshl_add_u32 v6, v4, 4, v6')
    e('v_add_u32 v6, s18, v6')
    e('v_lshlrev_b32 v7, 1, v5')
    e('s_mov_b32 s19, 0')
    for i in range(9):
        e(f'buffer_load_dwordx4 v[{16+4*i}:{19+4*i}], v6, s[24:27], s19 offen')
        if i < 8: e(f's_add_u32 s19, s19, 32768')
    for i in range(9):
        for b in range(2):
            e(f'buffer_load_ushort v{60+2*i+b}, v7, s[20:23], 0 offen offset:{i*8+b*1152}')
    for j in range(16): e(f'v_mov_b32 v{80+j}, 0')
    e('s_waitcnt vmcnt(0)')
    for k in range(18): e(f'v_lshlrev_b32 v{60+k}, 16, v{60+k}')
    for i in range(9):
        for j in range(4):
            unpack(96, 97, 16+4*i+j)
            for b in range(2):
                e(f'v_fmac_f32 v{80+8*b+2*j}, v{60+2*i+b}, v96')
                e(f'v_fmac_f32 v{80+8*b+2*j+1}, v{60+2*i+b}, v97')
    e('v_lshl_add_u32 v8, v1, 2, v3')
    e('v_lshlrev_b32 v8, 10, v8')
    e('v_lshl_add_u32 v8, v4, 5, v8')
    e('ds_write_b128 v8, v[80:83]')
    e('ds_write_b128 v8, v[84:87] offset:16')
    e('ds_write_b128 v8, v[88:91] offset:512')
    e('ds_write_b128 v8, v[92:95] offset:528')
    e('s_waitcnt lgkmcnt(0)')
    e('s_barrier')
    e('v_lshlrev_b32 v9, 2, v0')
    for s in range(16):
        e(f'ds_read_b32 v{16+s}, v9 offset:{s*1024}')
    e('s_waitcnt lgkmcnt(0)')
    for s in range(1, 16):
        e(f'v_add_f32 v16, v16, v{16+s}')
    e('s_lshl_b32 s18, s2, 10')
    e('v_add_u32 v9, s18, v9')
    e(f'buffer_store_dword v16, v9, s[28:31], 0 offen')
    lab('L_k1_end')
    e('s_endpgm')
    kernels.append((name, 256, 256, 16384))

def k2():
    name = 'qabs_kernel'
    kstart(name)
    e('s_cmp_ge_u32 s2, 256')
    e('s_cbranch_scc1 L_k2_end')
    e(f's_load_dwordx2 s[6:7], s[0:1], {KA["B_wuk"]}')
    e(f's_load_dwordx2 s[12:13], s[0:1], {KA["ws"]}')
    e('s_lshr_b32 s15, s2, 3')
    e('s_and_b32 s16, s2, 7')
    e('s_waitcnt lgkmcnt(0)')
    srd(24, 6, 4194304)
    srd(28, 12, 0x40000, QP)
    srd(32, 12, 0x10000, QABS)
    lanevars()
    e('s_lshl_b32 s17, s16, 6')
    e('v_lshl_add_u32 v5, v1, 4, v3')
    e('v_add_u32 v5, s17, v5')
    e('v_lshlrev_b32 v6, 13, v5')
    e('s_lshl_b32 s18, s15, 8')
    e('v_lshl_add_u32 v6, v4, 4, v6')
    e('v_add_u32 v6, s18, v6')
    e('s_mov_b32 s19, 0')
    for i in range(4):
        e(f'buffer_load_dwordx4 v[{16+4*i}:{19+4*i}], v6, s[24:27], s19 offen')
        if i < 3: e(f's_add_u32 s19, s19, 32768')
    e('s_add_u32 s18, s15, 32')
    e('s_lshl_b32 s18, s18, 12')
    e('v_lshlrev_b32 v7, 5, v4')
    e('v_add_u32 v7, s18, v7')
    for kq in range(4):
        for b in range(2):
            for hf in range(2):
                r = 32 + ((kq*2+b)*2+hf)*4
                e(f'buffer_load_dwordx4 v[{r}:{r+3}], v7, s[28:31], 0 offen offset:{kq*1024+b*512+hf*16}')
    e('s_waitcnt vmcnt(0)')
    for kq in range(1, 4):
        for j in range(16):
            e(f'v_add_f32 v{32+j}, v{32+j}, v{32+kq*16+j}')
    for j in range(8):
        e(f'v_cvt_pk_bf16_f32 v{48+j}, v{32+2*j}, v{33+2*j}')
    for j in range(8):
        unpack(32+2*j, 33+2*j, 48+j)
    for i in range(4):
        for b in range(2):
            e(f'v_mov_b32 v{60+2*i+b}, 0')
        for j in range(4):
            unpack(96, 97, 16+4*i+j)
            for b in range(2):
                e(f'v_fmac_f32 v{60+2*i+b}, v{32+8*b+2*j}, v96')
                e(f'v_fmac_f32 v{60+2*i+b}, v{32+8*b+2*j+1}, v97')
    e('s_nop 1')
    row_reduce([60+k for k in range(8)])
    for k in range(4):
        e(f'v_cvt_pk_bf16_f32 v{70+k}, v{60+2*k}, v{61+2*k}')
    e('s_lshl_b32 s18, s15, 10')
    e('v_lshlrev_b32 v8, 1, v5')
    e('v_add_u32 v8, s18, v8')
    e('v_add_u32 v9, 32768, v8')
    e('v_cmp_eq_u32 vcc, 0, v4')
    e('s_and_saveexec_b64 s[36:37], vcc')
    for i in range(4):
        e(f'buffer_store_short v{70+i}, v8, s[32:35], 0 offen offset:{i*8}')
        e(f'buffer_store_short_d16_hi v{70+i}, v9, s[32:35], 0 offen offset:{i*8}')
    e('s_mov_b64 exec, s[36:37]')
    lab('L_k2_end')
    e('s_endpgm')
    kernels.append((name, 256, 256, 0))

def k3():
    name = 'attn_kernel'
    kstart(name)
    e('s_cmp_ge_u32 s2, 512')
    e('s_cbranch_scc1 L_k3_end')
    e(f's_load_dwordx2 s[4:5], s[0:1], {KA["A_k"]}')
    e(f's_load_dwordx2 s[6:7], s[0:1], {KA["A_v"]}')
    e(f's_load_dwordx2 s[8:9], s[0:1], {KA["B_ckv"]}')
    e(f's_load_dwordx2 s[12:13], s[0:1], {KA["ws"]}')
    lanevars()
    e(f's_mov_b32 s40, {f32hex(CSC)}')
    e('s_waitcnt lgkmcnt(0)')
    e('s_cmp_ge_u32 s2, 256')
    e('s_cbranch_scc1 L_k3_B')
    srd(16, 4, 33554432)
    srd(20, 6, 33554432)
    srd(24, 12, 0x40000, QP)
    srd(28, 12, 0x40000, AP)
    srd(32, 12, 0x1000, AML)
    e('s_lshl_b32 s50, s2, 17')
    e('v_lshlrev_b32 v5, 14, v1')
    e('v_lshl_add_u32 v5, v3, 8, v5')
    e('v_lshl_add_u32 v5, v4, 4, v5')
    e('v_add_u32 v5, s50, v5')
    e('s_mov_b32 s44, 0')
    e('s_mov_b32 s45, 4096')
    e('s_mov_b32 s46, 8192')
    e('s_mov_b32 s47, 12288')
    for i in range(16):
        e(f'buffer_load_dwordx4 v[{64+4*i}:{67+4*i}], v5, s[16:19], s{44+i//4} offen offset:{(i%4)*1024}')
    e('s_bfe_u32 s51, s2, 0x40003')
    e('s_lshr_b32 s52, s2, 7')
    e('s_lshl_b32 s53, s51, 13')
    e('s_lshl_b32 s54, s52, 9')
    e('s_add_u32 s53, s53, s54')
    e('v_lshlrev_b32 v7, 5, v4')
    e('v_add_u32 v7, s53, v7')
    e('v_add_u32 v8, 4096, v7')
    for hq in range(2):
        for kq in range(4):
            for hf in range(2):
                r = 128 + ((hq*4+kq)*2+hf)*4
                e(f'buffer_load_dwordx4 v[{r}:{r+3}], v{7+hq}, s[24:27], 0 offen offset:{kq*1024+hf*16}')
    e('s_waitcnt vmcnt(0)')
    for hq in range(2):
        for kq in range(1, 4):
            for j in range(8):
                e(f'v_add_f32 v{128+hq*32+j}, v{128+hq*32+j}, v{128+hq*32+kq*8+j}')
        for j in range(4):
            e(f'v_cvt_pk_bf16_f32 v{200+hq*4+j}, v{128+hq*32+2*j}, v{129+hq*32+2*j}')
    for i in range(16):
        e(f'buffer_load_dwordx4 v[{128+4*i}:{131+4*i}], v5, s[20:23], s{44+i//4} offen offset:{(i%4)*1024}')
    for k in range(32): e(f'v_mov_b32 v{16+k}, 0')
    e('s_nop 1')
    for j in range(4):
        for i in range(16):
            for hq in range(2):
                e(f'v_dot2c_f32_bf16 v{16+2*i+hq}, v{64+4*i+j}, v{200+hq*4+j}')
    e('s_nop 3')
    row_reduce([16+k for k in range(32)])
    for hq in range(2):
        e(f'v_max_f32 v{48+hq}, v{16+hq}, v{18+hq}')
        for i in range(2, 16):
            e(f'v_max_f32 v{48+hq}, v{48+hq}, v{16+2*i+hq}')
        e(f'v_mul_f32 v{48+hq}, s40, v{48+hq}')
    for i in range(16):
        for hq in range(2):
            e(f'v_fma_f32 v{16+2*i+hq}, v{16+2*i+hq}, s40, -v{48+hq}')
    for k in range(32):
        e(f'v_exp_f32 v{16+k}, v{16+k}')
    e('s_nop 0')
    for hq in range(2):
        e(f'v_add_f32 v{50+hq}, v{16+hq}, v{18+hq}')
        for i in range(2, 16):
            e(f'v_add_f32 v{50+hq}, v{50+hq}, v{16+2*i+hq}')
    for k in range(16): e(f'v_mov_b32 v{208+k}, 0')
    e('s_waitcnt vmcnt(0)')
    for i in range(16):
        for j in range(4):
            unpack(52, 53, 128+4*i+j)
            for hq in range(2):
                e(f'v_fmac_f32 v{208+hq*8+2*j}, v{16+2*i+hq}, v52')
                e(f'v_fmac_f32 v{208+hq*8+2*j+1}, v{16+2*i+hq}, v53')
    e('v_lshl_add_u32 v8, v1, 2, v3')
    e('v_lshlrev_b32 v9, 10, v8')
    e('v_lshl_add_u32 v9, v4, 5, v9')
    e('ds_write_b128 v9, v[208:211]')
    e('ds_write_b128 v9, v[212:215] offset:16')
    e('ds_write_b128 v9, v[216:219] offset:512')
    e('ds_write_b128 v9, v[220:223] offset:528')
    e('v_lshlrev_b32 v10, 4, v8')
    e('v_mov_b32 v56, v48')
    e('v_mov_b32 v57, v50')
    e('v_mov_b32 v58, v49')
    e('v_mov_b32 v59, v51')
    e('ds_write_b128 v10, v[56:59] offset:32768')
    e('s_waitcnt lgkmcnt(0)')
    e('s_barrier')
    e('v_cmp_gt_u32 vcc, 256, v0')
    e('s_and_saveexec_b64 s[36:37], vcc')
    e('s_cbranch_execz L_k3_A_done')
    e('v_lshrrev_b32 v8, 7, v0')
    e('v_lshlrev_b32 v9, 3, v8')
    for s in range(32):
        e(f'ds_read_b64 v[{64+2*s}:{65+2*s}], v9 offset:{32768+s*16}')
    e('v_lshlrev_b32 v10, 2, v0')
    for s in range(32):
        e(f'ds_read_b32 v{128+s}, v10 offset:{s*1024}')
    e('s_waitcnt lgkmcnt(0)')
    e('v_max_f32 v11, v64, v66')
    for s in range(2, 32):
        e(f'v_max_f32 v11, v11, v{64+2*s}')
    for s in range(32):
        e(f'v_sub_f32 v{64+2*s}, v{64+2*s}, v11')
    for s in range(32):
        e(f'v_exp_f32 v{64+2*s}, v{64+2*s}')
    e('v_mov_b32 v12, 0')
    e('v_mov_b32 v13, 0')
    for s in range(32):
        e(f'v_fmac_f32 v12, v{64+2*s}, v{65+2*s}')
        e(f'v_fmac_f32 v13, v{64+2*s}, v{128+s}')
    e('s_lshl_b32 s54, s2, 10')
    e('v_add_u32 v10, s54, v10')
    e('buffer_store_dword v13, v10, s[28:31], 0 offen')
    e('s_lshl_b32 s54, s2, 4')
    e('v_add_u32 v9, s54, v9')
    e('v_mov_b32 v14, v11')
    e('v_mov_b32 v15, v12')
    e('v_and_b32 v8, 127, v0')
    e('v_cmp_eq_u32 vcc, 0, v8')
    e('s_and_b64 exec, exec, vcc')
    e('buffer_store_dwordx2 v[14:15], v9, s[32:35], 0 offen')
    lab('L_k3_A_done')
    e('s_endpgm')
    lab('L_k3_B')
    e('s_sub_u32 s50, s2, 256')
    e('s_lshr_b32 s51, s50, 7')
    e('s_bfe_u32 s52, s50, 0x10006')
    e('s_and_b32 s53, s50, 63')
    srd(16, 8, 8388608)
    srd(24, 12, 0x10000, QABS)
    srd(28, 12, 0x800000, BP)
    srd(32, 12, 0x8000, BML)
    RS = 1056
    SB = 0
    PB = SB + 8192
    CKB = 10752
    e('s_lshl_b32 s54, s51, 22')
    e('s_lshl_b32 s55, s53, 16')
    e('s_add_u32 s54, s54, s55')
    e('v_lshlrev_b32 v5, 13, v1')
    e('v_lshl_add_u32 v5, v2, 4, v5')
    e('v_add_u32 v5, s54, v5')
    e('s_movk_i32 s44, 0x1000')
    for i in range(8):
        if i < 4: e(f'buffer_load_dwordx4 v[{64+4*i}:{67+4*i}], v5, s[16:19], 0 offen offset:{i*1024}')
        else:     e(f'buffer_load_dwordx4 v[{64+4*i}:{67+4*i}], v5, s[16:19], s44 offen offset:{(i-4)*1024}')
    e('s_lshl_b32 s54, s51, 5')
    e('s_lshl_b32 s55, s52, 4')
    e('s_add_u32 s54, s54, s55')
    e('v_add_u32 v6, s54, v4')
    e('v_lshlrev_b32 v6, 10, v6')
    e('v_lshrrev_b32 v7, 2, v1')
    e('v_and_b32 v8, 3, v1')
    e('v_lshl_add_u32 v6, v7, 9, v6')
    e('v_lshl_add_u32 v6, v3, 4, v6')
    for ks in range(8):
        e(f'buffer_load_dwordx4 v[{128+4*ks}:{131+4*ks}], v6, s[24:27], 0 offen offset:{ks*64}')
    e(f'v_mul_u32_u24 v9, {8*RS}, v1')
    e('v_lshl_add_u32 v9, v2, 4, v9')
    e(f'v_add_u32 v9, {CKB}, v9')
    e('s_waitcnt vmcnt(8)')
    for i in range(8):
        e(f'ds_write_b128 v9, v[{64+4*i}:{67+4*i}] offset:{i*RS}')
    e('s_waitcnt vmcnt(0) lgkmcnt(0)')
    e('s_barrier')
    e('v_lshl_add_u32 v10, v8, 4, v4')
    e(f'v_mul_u32_u24 v10, {RS}, v10')
    e('v_lshl_add_u32 v10, v7, 9, v10')
    e('v_lshl_add_u32 v10, v3, 4, v10')
    e(f'v_add_u32 v10, {CKB}, v10')
    for ks in range(8):
        e(f'ds_read_b128 v[{64+4*ks}:{67+4*ks}], v10 offset:{ks*64}')
    for k in range(4): e(f'v_mov_b32 v{16+k}, 0')
    e('s_waitcnt lgkmcnt(0)')
    for ks in range(8):
        e(f'v_mfma_f32_16x16x32_bf16 v[16:19], v[{64+4*ks}:{67+4*ks}], v[{128+4*ks}:{131+4*ks}], v[16:19]')
    e('s_nop 15')
    e('v_lshlrev_b32 v11, 12, v7')
    e('v_lshl_add_u32 v11, v4, 8, v11')
    e('v_lshl_add_u32 v11, v8, 6, v11')
    e('v_lshl_add_u32 v11, v3, 4, v11')
    e(f'ds_write_b128 v11, v[16:19] offset:{SB}')
    e('s_waitcnt lgkmcnt(0)')
    e('s_barrier')
    e('v_lshrrev_b32 v12, 5, v2')
    e('v_lshl_add_u32 v12, v1, 1, v12')
    e('v_and_b32 v13, 31, v2')
    e('v_lshlrev_b32 v14, 8, v12')
    e('v_lshl_add_u32 v14, v13, 3, v14')
    e(f'ds_read_b64 v[16:17], v14 offset:{SB}')
    e(f'ds_read_b64 v[18:19], v14 offset:{SB+4096}')
    e('s_waitcnt lgkmcnt(0)')
    e('v_add_f32 v16, v16, v18')
    e('v_add_f32 v17, v17, v19')
    e('v_max_f32 v20, v16, v17')
    e('s_nop 1')
    row_reduce([20], 'max')
    e('ds_swizzle_b32 v21, v20 offset:0x401F')
    e('s_waitcnt lgkmcnt(0)')
    e('v_max_f32 v20, v20, v21')
    e('v_mul_f32 v20, s40, v20')
    e('v_fma_f32 v16, v16, s40, -v20')
    e('v_fma_f32 v17, v17, s40, -v20')
    e('v_exp_f32 v16, v16')
    e('v_exp_f32 v17, v17')
    e('s_nop 0')
    e('v_add_f32 v22, v16, v17')
    e('v_cvt_pk_bf16_f32 v23, v16, v17')
    e('s_nop 0')
    row_reduce([22], 'add')
    e('ds_swizzle_b32 v21, v22 offset:0x401F')
    e('v_mul_u32_u24 v15, 144, v12')
    e('v_lshl_add_u32 v15, v13, 2, v15')
    e(f'ds_write_b32 v15, v23 offset:{PB}')
    e('s_waitcnt lgkmcnt(0)')
    e('v_add_f32 v21, v22, v21')
    e('s_lshl_b32 s54, s50, 7')
    e('v_lshlrev_b32 v24, 3, v12')
    e('v_add_u32 v24, s54, v24')
    e('v_cmp_eq_u32 vcc, 0, v13')
    e('s_and_saveexec_b64 s[36:37], vcc')
    e('buffer_store_dwordx2 v[20:21], v24, s[32:35], 0 offen')
    e('s_mov_b64 exec, s[36:37]')
    e('s_barrier')
    e('v_mul_u32_u24 v25, 144, v4')
    e('v_lshl_add_u32 v25, v3, 4, v25')
    e(f'ds_read_b128 v[64:67], v25 offset:{PB}')
    e(f'ds_read_b128 v[68:71], v25 offset:{PB+64}')
    e('v_lshrrev_b32 v26, 2, v4')
    e('v_lshl_add_u32 v26, v3, 3, v26')
    e(f'v_mul_u32_u24 v26, {RS}, v26')
    e('v_and_b32 v27, 3, v4')
    e('v_lshl_add_u32 v26, v27, 3, v26')
    e('v_lshl_add_u32 v26, v1, 7, v26')
    e(f'v_add_u32 v26, {CKB}, v26')
    for ct in range(4):
        for ks in range(2):
            for t in range(2):
                r = 128 + ((ct*2+ks)*2+t)*2
                e(f'ds_read_b64_tr_b16 v[{r}:{r+1}], v26 offset:{(ks*32+t*4)*RS + ct*32}')
    for k in range(16): e(f'v_mov_b32 v{32+k}, 0')
    e('s_waitcnt lgkmcnt(0)')
    for ct in range(4):
        for ks in range(2):
            r = 128 + (ct*2+ks)*4
            e(f'v_mfma_f32_16x16x32_bf16 v[{32+4*ct}:{35+4*ct}], v[{r}:{r+3}], v[{64+4*ks}:{67+4*ks}], v[{32+4*ct}:{35+4*ct}]')
    e('s_nop 15')
    e('s_lshl_b32 s54, s50, 15')
    e('v_lshlrev_b32 v28, 11, v4')
    e('v_lshl_add_u32 v28, v1, 8, v28')
    e('v_lshl_add_u32 v28, v3, 4, v28')
    e('v_add_u32 v28, s54, v28')
    for ct in range(4):
        e(f'buffer_store_dwordx4 v[{32+4*ct}:{35+4*ct}], v28, s[28:31], 0 offen offset:{ct*64}')
    lab('L_k3_end')
    e('s_endpgm')
    kernels.append((name, 512, 512, 81920))

def k4():
    name = 'uv_kernel'
    kstart(name)
    e('s_cmp_ge_u32 s2, 256')
    e('s_cbranch_scc1 L_k4_end')
    e(f's_load_dwordx2 s[6:7], s[0:1], {KA["B_wuv"]}')
    e(f's_load_dwordx2 s[12:13], s[0:1], {KA["ws"]}')
    e('s_lshr_b32 s15, s2, 3')
    e('s_and_b32 s16, s2, 7')
    e('s_waitcnt lgkmcnt(0)')
    srd(24, 6, 4194304)
    srd(28, 12, 0x800000, BP)
    srd(32, 12, 0x8000, BML)
    srd(40, 12, 0x40000, CTXP)
    lanevars()
    e('s_lshl_b32 s17, s16, 6')
    e('v_lshl_add_u32 v5, v1, 4, v3')
    e('v_add_u32 v5, s17, v5')
    e('v_lshlrev_b32 v6, 13, v5')
    e('s_lshl_b32 s18, s15, 8')
    e('v_lshl_add_u32 v6, v4, 4, v6')
    e('v_add_u32 v6, s18, v6')
    e('s_mov_b32 s19, 0')
    for i in range(4):
        e(f'buffer_load_dwordx4 v[{16+4*i}:{19+4*i}], v6, s[24:27], s19 offen')
        if i < 3: e(f's_add_u32 s19, s19, 32768')
    e('s_lshr_b32 s20, s15, 4')
    e('s_and_b32 s21, s15, 15')
    e('v_lshrrev_b32 v7, 1, v1')
    e('v_lshlrev_b32 v8, 1, v7')
    e('v_add_u32 v8, s20, v8')
    e('v_lshl_add_u32 v9, v8, 6, v2')
    e('v_lshlrev_b32 v9, 4, v9')
    e('v_add_u32 v9, s21, v9')
    e('v_lshlrev_b32 v9, 3, v9')
    e('buffer_load_dwordx2 v[40:41], v9, s[32:35], 0 offen')
    e('v_and_b32 v10, 1, v1')
    e('v_lshl_add_u32 v10, v10, 5, v3')
    e('v_lshl_add_u32 v11, v8, 6, v10')
    e('v_lshlrev_b32 v11, 4, v11')
    e('v_add_u32 v11, s21, v11')
    e('v_lshlrev_b32 v11, 11, v11')
    e('s_lshl_b32 s22, s16, 8')
    e('v_lshl_add_u32 v11, v4, 4, v11')
    e('v_add_u32 v11, s22, v11')
    e('s_mov_b32 s19, 0')
    for i in range(8):
        e(f'buffer_load_dwordx4 v[{64+4*i}:{67+4*i}], v11, s[28:31], s19 offen')
        if i < 7: e(f's_add_u32 s19, s19, {4*16*2048}')
    e('s_waitcnt vmcnt(8)')
    e('v_mov_b32 v42, v40')
    e('s_nop 1')
    row_reduce([42], 'max')
    e('ds_swizzle_b32 v43, v42 offset:0x401F')
    e('s_waitcnt lgkmcnt(0)')
    e('v_max_f32 v42, v42, v43')
    e('v_mov_b32 v43, v42')
    e('s_nop 1')
    e('v_permlane32_swap_b32 v42, v43')
    e('s_nop 1')
    e('v_max_f32 v42, v42, v43')
    e('v_sub_f32 v40, v40, v42')
    e('v_exp_f32 v40, v40')
    e('s_nop 0')
    e('v_mul_f32 v44, v40, v41')
    e('s_nop 1')
    row_reduce([44], 'add')
    e('ds_swizzle_b32 v43, v44 offset:0x401F')
    e('s_waitcnt lgkmcnt(0)')
    e('v_add_f32 v44, v44, v43')
    e('v_mov_b32 v43, v44')
    e('s_nop 1')
    e('v_permlane32_swap_b32 v44, v43')
    e('s_nop 1')
    e('v_add_f32 v44, v44, v43')
    e('v_rcp_f32 v44, v44')
    e('s_nop 0')
    e('v_mul_f32 v40, v40, v44')
    for i in range(8):
        e(f'v_add_u32 v45, {4*i}, v10')
        e('v_lshlrev_b32 v45, 2, v45')
        e(f'ds_bpermute_b32 v{48+i}, v45, v40')
    e('s_waitcnt vmcnt(0) lgkmcnt(0)')
    for k in range(4): e(f'v_mov_b32 v{56+k}, 0')
    for i in range(8):
        for k in range(4):
            e(f'v_fmac_f32 v{56+k}, v{48+i}, v{64+4*i+k}')
    e('v_lshl_add_u32 v12, v1, 2, v3')
    e('v_lshlrev_b32 v12, 8, v12')
    e('v_lshl_add_u32 v12, v4, 4, v12')
    e('ds_write_b128 v12, v[56:59]')
    e('s_waitcnt lgkmcnt(0)')
    e('s_barrier')
    e('v_lshl_add_u32 v13, v1, 4, v3')
    e('v_lshlrev_b32 v13, 2, v13')
    for i in range(4):
        for b in range(2):
            for s in range(8):
                e(f'ds_read_b32 v{64+(i*2+b)*8+s}, v13 offset:{(b*8+s)*256+i*16}')
    e('s_waitcnt lgkmcnt(0)')
    for ib in range(8):
        for s in range(1, 8):
            e(f'v_add_f32 v{64+ib*8}, v{64+ib*8}, v{64+ib*8+s}')
    for j in range(16): e(f'v_mov_b32 v{128+j}, 0')
    for i in range(4):
        for j in range(4):
            unpack(96+40, 97+40, 16+4*i+j) if False else None
            e(f'v_lshlrev_b32 v146, 16, v{16+4*i+j}')
            e(f'v_and_b32 v147, 0xffff0000, v{16+4*i+j}')
            for b in range(2):
                e(f'v_fmac_f32 v{128+8*b+2*j}, v{64+(i*2+b)*8}, v146')
                e(f'v_fmac_f32 v{128+8*b+2*j+1}, v{64+(i*2+b)*8}, v147')
    e('v_lshl_add_u32 v8, v1, 2, v3')
    e('v_lshlrev_b32 v8, 10, v8')
    e('v_lshl_add_u32 v8, v4, 5, v8')
    e('ds_write_b128 v8, v[128:131] offset:4096')
    e('ds_write_b128 v8, v[132:135] offset:4112')
    e('ds_write_b128 v8, v[136:139] offset:4608')
    e('ds_write_b128 v8, v[140:143] offset:4624')
    e('s_waitcnt lgkmcnt(0)')
    e('s_barrier')
    e('v_lshlrev_b32 v9, 2, v0')
    for s in range(16):
        e(f'ds_read_b32 v{16+s}, v9 offset:{4096+s*1024}')
    e('s_waitcnt lgkmcnt(0)')
    for s in range(1, 16):
        e(f'v_add_f32 v16, v16, v{16+s}')
    e('s_lshl_b32 s18, s2, 10')
    e('v_add_u32 v9, s18, v9')
    e(f'buffer_store_dword v16, v9, s[40:43], 0 offen')
    lab('L_k4_end')
    e('s_endpgm')
    kernels.append((name, 256, 256, 4096+16384))

def k5():
    name = 'oproj_kernel'
    kstart(name)
    e('s_cmp_ge_u32 s2, 288')
    e('s_cbranch_scc1 L_k5_end')
    e(f's_load_dwordx2 s[4:5], s[0:1], {KA["A_wo"]}')
    e(f's_load_dwordx2 s[6:7], s[0:1], {KA["B_wo"]}')
    e(f's_load_dwordx2 s[12:13], s[0:1], {KA["ws"]}')
    e('s_cmp_ge_u32 s2, 144')
    e('s_cselect_b32 s14, 1, 0')
    e('s_mul_i32 s15, s14, 144')
    e('s_sub_u32 s15, s2, s15')
    e('s_lshr_b32 s16, s15, 4')
    e('s_and_b32 s17, s15, 15')
    e('s_waitcnt lgkmcnt(0)')
    e('s_cmp_eq_u32 s14, 0')
    e('s_cselect_b32 s4, s4, s6')
    e('s_cselect_b32 s5, s5, s7')
    srd(24, 4, 4718592)
    srd(28, 12, 0x40000, AP)
    srd(32, 12, 0x1000, AML)
    srd(40, 12, 0x40000, CTXP)
    srd(44, 12, 0x40000, OUTP)
    e('v_lshrrev_b32 v1, 6, v0')
    e('v_and_b32 v2, 63, v0')
    e('v_lshrrev_b32 v3, 3, v2')
    e('v_and_b32 v4, 7, v2')
    e('s_lshl_b32 s18, s17, 8')
    e('v_lshl_add_u32 v5, v1, 6, v3')
    e('v_add_u32 v6, s18, v5')
    e('s_movk_i32 s19, 1152')
    e('v_mul_lo_u32 v6, v6, s19')
    e('s_lshl_b32 s20, s16, 7')
    e('v_lshl_add_u32 v6, v4, 4, v6')
    e('v_add_u32 v6, s20, v6')
    e('s_mov_b32 s19, 0')
    for i in range(8):
        e(f'buffer_load_dwordx4 v[{16+4*i}:{19+4*i}], v6, s[24:27], s19 offen')
        if i < 7: e(f's_add_u32 s19, s19, {8*1152}')
    e('s_cmp_eq_u32 s14, 0')
    e('s_cbranch_scc0 L_k5_B')
    for b in range(2):
        e(f's_add_u32 s21, s17, {b*16}')
        e('s_lshl_b32 s22, s21, 13')
        e('v_lshlrev_b32 v7, 2, v0')
        e('v_add_u32 v7, s22, v7')
        e('s_movk_i32 s23, 0x1000')
        for c in range(8):
            e(f'buffer_load_dword v{64+c}, v7, s[28:31], {"0" if c<4 else "s23"} offen offset:{(c%4)*1024}')
        e('s_lshl_b32 s22, s21, 7')
        e('v_lshrrev_b32 v8, 7, v0')
        e('v_lshlrev_b32 v8, 3, v8')
        e('v_add_u32 v8, s22, v8')
        for c in range(8):
            e(f'buffer_load_dwordx2 v[{72+2*c}:{73+2*c}], v8, s[32:35], 0 offen offset:{c*16}')
        e('s_waitcnt vmcnt(0)')
        e('v_max_f32 v9, v72, v74')
        for c in range(2, 8): e(f'v_max_f32 v9, v9, v{72+2*c}')
        for c in range(8): e(f'v_sub_f32 v{72+2*c}, v{72+2*c}, v9')
        for c in range(8): e(f'v_exp_f32 v{72+2*c}, v{72+2*c}')
        e('v_mov_b32 v10, 0')
        e('v_mov_b32 v11, 0')
        for c in range(8):
            e(f'v_fmac_f32 v10, v{72+2*c}, v{73+2*c}')
            e(f'v_fmac_f32 v11, v{72+2*c}, v{64+c}')
        e('v_rcp_f32 v10, v10')
        e('s_nop 0')
        e(f'v_mul_f32 v{90+b}, v11, v10')
    e('s_branch L_k5_J')
    lab('L_k5_B')
    e('v_lshrrev_b32 v8, 7, v0')
    e('s_lshl_b32 s21, s17, 1')
    e('v_add_u32 v8, s21, v8')
    e('v_lshlrev_b32 v8, 13, v8')
    e('v_and_b32 v9, 127, v0')
    e('v_lshl_add_u32 v8, v9, 2, v8')
    e('s_mov_b32 s19, 0')
    for cs in range(8):
        e(f'buffer_load_dword v{64+2*cs}, v8, s[40:43], s19 offen')
        e(f'buffer_load_dword v{65+2*cs}, v8, s[40:43], s19 offen offset:512')
        if cs < 7: e('s_add_u32 s19, s19, 1024')
    e('s_waitcnt vmcnt(0)')
    for cs in range(1, 8):
        e(f'v_add_f32 v64, v64, v{64+2*cs}')
        e(f'v_add_f32 v65, v65, v{65+2*cs}')
    e('v_mov_b32 v90, v64')
    e('v_mov_b32 v91, v65')
    lab('L_k5_J')
    e('v_cvt_pk_bf16_f32 v92, v90, v91')
    unpack(90, 91, 92)
    e('v_lshlrev_b32 v7, 2, v0')
    e('ds_write_b32 v7, v90')
    e('ds_write_b32 v7, v91 offset:1024')
    e('s_waitcnt vmcnt(0) lgkmcnt(0)')
    e('s_barrier')
    e('v_lshlrev_b32 v8, 2, v5')
    for i in range(8):
        for b in range(2):
            e(f'ds_read_b32 v{64+2*i+b}, v8 offset:{b*1024+i*32}')
    for j in range(16): e(f'v_mov_b32 v{80+j}, 0')
    e('s_waitcnt lgkmcnt(0)')
    for i in range(8):
        for j in range(4):
            unpack(96, 97, 16+4*i+j)
            for b in range(2):
                e(f'v_fmac_f32 v{80+8*b+2*j}, v{64+2*i+b}, v96')
                e(f'v_fmac_f32 v{80+8*b+2*j+1}, v{64+2*i+b}, v97')
    e('v_lshl_add_u32 v8, v1, 3, v3')
    e('v_lshlrev_b32 v8, 9, v8')
    e('v_lshl_add_u32 v8, v4, 5, v8')
    e('ds_write_b128 v8, v[80:83] offset:2048')
    e('ds_write_b128 v8, v[84:87] offset:2064')
    e('ds_write_b128 v8, v[88:91] offset:2304')
    e('ds_write_b128 v8, v[92:95] offset:2320')
    e('s_waitcnt lgkmcnt(0)')
    e('s_barrier')
    e('v_cmp_gt_u32 vcc, 128, v0')
    e('s_and_saveexec_b64 s[36:37], vcc')
    e('s_cbranch_execz L_k5_end')
    e('v_lshlrev_b32 v9, 2, v0')
    for s in range(32):
        e(f'ds_read_b32 v{16+s}, v9 offset:{2048+s*512}')
    e('s_waitcnt lgkmcnt(0)')
    for s in range(1, 32):
        e(f'v_add_f32 v16, v16, v{16+s}')
    e('s_lshl_b32 s18, s14, 4')
    e('s_add_u32 s18, s18, s17')
    e('s_mul_i32 s18, s18, 4608')
    e('s_lshl_b32 s19, s16, 8')
    e('s_add_u32 s18, s18, s19')
    e('v_lshrrev_b32 v10, 6, v0')
    e('v_mul_u32_u24 v10, 2304, v10')
    e('v_and_b32 v11, 63, v0')
    e('v_lshl_add_u32 v10, v11, 2, v10')
    e('v_add_u32 v10, s18, v10')
    e('buffer_store_dword v16, v10, s[44:47], 0 offen')
    lab('L_k5_end')
    e('s_endpgm')
    kernels.append((name, 288, 256, 2048+16384))

def k6():
    name = 'final_kernel'
    kstart(name)
    e('s_cmp_ge_u32 s2, 5')
    e('s_cbranch_scc1 L_k6_end')
    e(f's_load_dwordx2 s[4:5], s[0:1], {KA["A_x"]}')
    e(f's_load_dwordx2 s[6:7], s[0:1], {KA["gate"]}')
    e(f's_load_dwordx2 s[8:9], s[0:1], {KA["out"]}')
    e(f's_load_dwordx2 s[12:13], s[0:1], {KA["ws"]}')
    e('s_waitcnt lgkmcnt(0)')
    srd(20, 4, 2304)
    srd(24, 6, 1152)
    srd(28, 8, 2304)
    srd(44, 12, 0x40000, OUTP)
    e('v_and_b32 v2, 63, v0')
    e('v_lshlrev_b32 v3, 1, v2')
    for k in range(9):
        e(f'buffer_load_ushort v{16+k}, v3, s[24:27], 0 offen offset:{k*128}')
        e(f'buffer_load_ushort v{32+k}, v3, s[20:23], 0 offen offset:{k*128}')
        e(f'buffer_load_ushort v{48+k}, v3, s[20:23], 0 offen offset:{k*128+1152}')
    e('s_lshl_b32 s14, s2, 8')
    e('v_add_u32 v4, s14, v0')
    e('v_cmp_le_u32 vcc, 576, v4')
    e('s_nop 1')
    e('v_cndmask_b32 v5, 0, 1, vcc')
    e('v_mul_u32_u24 v6, 576, v5')
    e('v_sub_u32 v6, v4, v6')
    e('v_mul_u32_u24 v7, 2304, v5')
    e('v_lshl_add_u32 v7, v6, 2, v7')
    e('s_mov_b32 s15, 0')
    for k in range(32):
        e(f'buffer_load_dword v{64+k}, v7, s[44:47], s15 offen')
        if k < 31: e('s_add_u32 s15, s15, 4608')
    e('s_waitcnt vmcnt(0)')
    e('v_mov_b32 v100, 0')
    e('v_mov_b32 v101, 0')
    for k in range(9):
        e(f'v_lshlrev_b32 v{16+k}, 16, v{16+k}')
        e(f'v_lshlrev_b32 v{32+k}, 16, v{32+k}')
        e(f'v_lshlrev_b32 v{48+k}, 16, v{48+k}')
        e(f'v_mul_f32 v{32+k}, v{32+k}, v{16+k}')
        e(f'v_mul_f32 v{48+k}, v{48+k}, v{16+k}')
        e(f'v_cvt_pk_bf16_f32 v102, v{32+k}, v{48+k}')
        unpack(103, 104, 102)
        e('v_add_f32 v100, v100, v103')
        e('v_add_f32 v101, v101, v104')
    e('s_nop 1')
    row_reduce([100, 101], 'add')
    for r in (100, 101):
        e(f'ds_swizzle_b32 v102, v{r} offset:0x401F')
        e('s_waitcnt lgkmcnt(0)')
        e(f'v_add_f32 v{r}, v{r}, v102')
        e(f'v_mov_b32 v102, v{r}')
        e('s_nop 1')
        e(f'v_permlane32_swap_b32 v{r}, v102')
        e('s_nop 1')
        e(f'v_add_f32 v{r}, v{r}, v102')
    e('v_cvt_pk_bf16_f32 v102, v100, v101')
    unpack(100, 101, 102)
    e(f's_mov_b32 s16, {f32hex(-1.4426950408889634)}')
    e('v_mul_f32 v100, s16, v100')
    e('v_mul_f32 v101, s16, v101')
    e('v_exp_f32 v100, v100')
    e('v_exp_f32 v101, v101')
    e('s_nop 0')
    e('v_add_f32 v100, 1.0, v100')
    e('v_add_f32 v101, 1.0, v101')
    e('v_rcp_f32 v100, v100')
    e('v_rcp_f32 v101, v101')
    e('s_nop 0')
    e('v_cvt_pk_bf16_f32 v102, v100, v101')
    unpack(100, 101, 102)
    e('v_cndmask_b32 v105, v100, v101, vcc')
    for k in range(1, 16):
        e(f'v_add_f32 v64, v64, v{64+k}')
        e(f'v_add_f32 v80, v80, v{80+k}')
    e('v_cvt_pk_bf16_f32 v102, v64, v80')
    unpack(64, 80, 102)
    e('v_sub_f32 v106, 1.0, v105')
    e('v_mul_f32 v107, v105, v64')
    e('v_cvt_pk_bf16_f32 v102, v106, v107')
    unpack(106, 107, 102)
    e('v_mul_f32 v108, v106, v80')
    e('v_cvt_pk_bf16_f32 v102, v108, v108')
    e('v_lshlrev_b32 v108, 16, v102')
    e('v_add_f32 v109, v107, v108')
    e('v_cvt_pk_bf16_f32 v102, v109, v109')
    e('v_lshlrev_b32 v8, 1, v4')
    e('buffer_store_short v102, v8, s[28:31], 0 offen')
    lab('L_k6_end')
    e('s_endpgm')
    kernels.append((name, 5, 256, 0))

out.append('.amdgcn_target "amdgcn-amd-amdhsa--gfx950"')
out.append('.text')
for f in (k1, k2, k3, k4, k5, k6): f()
out.append('.section .rodata,"a"')
for (name, g, b, lds) in kernels:
    out.append('.p2align 6')
    out.append(f'.amdhsa_kernel {name}')
    out.append('  .amdhsa_next_free_vgpr 256')
    out.append('  .amdhsa_next_free_sgpr 102')
    out.append('  .amdhsa_accum_offset 256')
    out.append('  .amdhsa_group_segment_fixed_size 0')
    out.append('  .amdhsa_kernarg_size 120')
    out.append('  .amdhsa_user_sgpr_count 2')
    out.append('  .amdhsa_user_sgpr_kernarg_segment_ptr 1')
    out.append('  .amdhsa_system_sgpr_workgroup_id_x 1')
    out.append('.end_amdhsa_kernel')
hdr = HEADER
for (name, g, b, lds) in kernels:
    hdr += f'; @launch kernel={name} grid=({g},1,1) block=({b},1,1) lds={lds}\n'
open(sys.argv[1], 'w').write(hdr + '\n'.join(out) + '\n')
```

```python
import sys, struct, re

REF = open('gated_mix__gqa_block_cached__compressed_kv_cla__decode.s.ref').read()
HEADER = REF.split('; Override')[0]
NAME = 'gated_mix__gqa_block_cached__compressed_kv_cla__decode_kernel'
TSTAMP = int(__import__('os').environ.get('TSTAMP', '0'))
KDEPTH = int(__import__('os').environ.get('KDEPTH', '6'))

FLG_Q, FLG_U, FLG_BP, FLG_V, FLG_AP, FLG_O = 0x0000, 0x0400, 0x0800, 0x0C00, 0x1000, 0x1400
QP   = 0x010000
QABS = 0x050000
AP   = 0x060000
AML  = 0x0A0000
BML  = 0x0B0000
CTXP = 0x0C0000
OUTP = 0x100000
TSB  = 0x180000
BP   = 0x200000
WS_USED = 0xA00000

CSC = 0.08838834764831845 * 1.4426950408889634
def f32hex(x): return '0x%08x' % struct.unpack('<I', struct.pack('<f', x))[0]

out = []
def e(s):
    m = re.search(r'offset:(\d+)', s)
    if m and s.startswith('buffer_'): assert int(m.group(1)) < 4096, s
    if m and s.startswith('ds_') and 'swizzle' not in s: assert int(m.group(1)) < 65536, s
    out.append('  ' + s)
def lab(s): out.append(s + ':')
_uid = [0]
def uid(p):
    _uid[0] += 1
    return f'L_{p}_{_uid[0]}'

KA = dict(A_x=0, A_k=8, A_v=16, A_wq=24, A_wo=32, B_x=40, B_ckv=48, B_wq=56, B_wuk=64, B_wuv=72, B_wo=80, gate=88, out=96, dbg=104, ws=112)

def srd(s, plo, nbytes):
    e(f's_mov_b32 s{s}, s{plo}')
    e(f's_and_b32 s{s+1}, s{plo+1}, 0xffff')
    e(f's_mov_b32 s{s+2}, {nbytes}')
    e(f's_mov_b32 s{s+3}, 0x20000')

def unpack(lo, hi, src):
    e(f'v_lshlrev_b32 v{lo}, 16, v{src}')
    e(f'v_and_b32 v{hi}, 0xffff0000, v{src}')

def row_reduce(regs, op='add'):
    for sh in (8, 4, 2, 1):
        for r in regs:
            e(f'v_{op}_f32_dpp v{r}, v{r}, v{r} row_ror:{sh} row_mask:0xf bank_mask:0xf')
        if len(regs) < 3: e('s_nop 1')

def xrow_reduce(regs, tmp, op='add'):
    for r, t in zip(regs, tmp): e(f'v_mov_b32 v{t}, v{r}')
    if len(regs) < 2: e('s_nop 1')
    for r, t in zip(regs, tmp): e(f'v_permlane16_swap_b32 v{r}, v{t}')
    if len(regs) < 2: e('s_nop 1')
    for r, t in zip(regs, tmp): e(f'v_{op}_f32 v{r}, v{r}, v{t}')
    for r, t in zip(regs, tmp): e(f'v_mov_b32 v{t}, v{r}')
    if len(regs) < 2: e('s_nop 1')
    for r, t in zip(regs, tmp): e(f'v_permlane32_swap_b32 v{r}, v{t}')
    if len(regs) < 2: e('s_nop 1')
    for r, t in zip(regs, tmp): e(f'v_{op}_f32 v{r}, v{r}, v{t}')

S_WS, S_DBG, S_X = 4, 8, 12
ts_n = [0]
def TS():
    if TSTAMP:
        k = ts_n[0]; ts_n[0] += 1
        assert k < 16
        e(f's_memrealtime s[{64+2*k}:{65+2*k}]')

def ts_dump(role):
    if not TSTAMP: return
    e('s_waitcnt lgkmcnt(0)')
    e('s_lshl_b32 s32, s2, 4'); e('s_add_u32 s32, s32, s3'); e('s_lshl_b32 s32, s32, 7'); e(f's_add_u32 s32, s32, {TSB}')
    e('s_mov_b64 exec, 1')
    e('v_mov_b32 v2, 0')
    for k in range(ts_n[0]):
        e(f'v_mov_b32 v4, s{64+2*k}'); e(f'v_mov_b32 v5, s{65+2*k}')
        e(f'buffer_store_dwordx2 v[4:5], v2, s[{S_WS}:{S_WS+3}], s32 offen offset:{k*8}')
        e('s_nop 1')
    e('s_mov_b64 exec, -1')

L_CNT = 0
C_Q, C_U, C_BP, C_V, C_A, C_O, C_O2 = 0, 4, 8, 12, 16, 20, 24
C_BAR = 64
L_AO   = 256
L_AML  = L_AO + 32768
L_AQ   = L_AML + 512
L_CQ   = L_AQ + 8192
L_RED  = L_CQ + 8192
L_S    = L_RED + 24576
L_P    = L_S + 8192
L_OV   = L_P + 4608
L_CKV  = L_OV + 4096
L_END  = L_CKV + 64*1056
assert L_END <= 163840, L_END
RS = 1056

def lds_addr_const(vreg, val):
    e(f'v_mov_b32 v{vreg}, {val}')

def cbar(k, va, vt, st=32):
    L = uid('cbar')
    e('s_waitcnt lgkmcnt(0)')
    e(f'v_mov_b32 v{va}, {C_BAR + 4*k}')
    e(f'v_mov_b32 v{vt}, 1')
    e('s_mov_b64 exec, 1')
    e(f'ds_add_u32 v{va}, v{vt}')
    e('s_mov_b64 exec, -1')
    lab(L)
    e(f'ds_read_b32 v{vt}, v{va}')
    e('s_waitcnt lgkmcnt(0)')
    e(f'v_readfirstlane_b32 s{st}, v{vt}')
    e('s_nop 0')
    e(f's_cmp_ge_u32 s{st}, 8')
    e(f's_cbranch_scc1 {L}_d')
    e('s_sleep 0') if False else None
    e(f's_branch {L}')
    lab(L + '_d')

def last_arriver(cnt, n, va, vt, skip_label, st=32):
    e('s_waitcnt lgkmcnt(0)')
    e(f'v_mov_b32 v{va}, {cnt}')
    e(f'v_mov_b32 v{vt}, 1')
    e('s_mov_b64 exec, 1')
    e(f'ds_add_rtn_u32 v{vt}, v{va}, v{vt}')
    e('s_waitcnt lgkmcnt(0)')
    e('s_mov_b64 exec, -1')
    e(f'v_readfirstlane_b32 s{st}, v{vt}')
    e('s_nop 0')
    e(f's_cmp_lg_u32 s{st}, {n-1}')
    e(f's_cbranch_scc1 {skip_label}')

def set_flag(flg_off, idx_sgpr, vtag, vt):
    e('s_waitcnt vmcnt(0)')
    e(f's_lshl_b32 s33, s{idx_sgpr}, 2')
    e(f's_add_u32 s33, s33, {flg_off}')
    e(f'v_mov_b32 v{vt}, 0')
    e('s_mov_b64 exec, 1')
    e(f'buffer_store_dword v{vtag}, v{vt}, s[{S_WS}:{S_WS+3}], s33 offen sc1')
    e('s_mov_b64 exec, -1')

def poll_flags(soff_expr_emit, nflags, vtag, vaddr, vf, reload_tag=False):
    L = uid('poll')
    soff_expr_emit()
    if nflags <= 64: per, nl = 1, nflags
    elif nflags <= 128: per, nl = 2, nflags // 2
    else: per, nl = 4, nflags // 4
    e(f'v_mbcnt_lo_u32_b32 v{vaddr}, -1, 0')
    e(f'v_mbcnt_hi_u32_b32 v{vaddr}, -1, v{vaddr}')
    e(f'v_lshlrev_b32 v{vaddr}, {2 + {1:0,2:1,4:2}[per]}, v{vaddr}')
    if nl < 64: e(f's_mov_b64 exec, {hex((1 << nl) - 1)}')
    e('s_mov_b32 s41, 0')
    lab(L)
    if reload_tag:
        e(f'v_mov_b32 v{vf+4}, 0')
        e(f'buffer_load_dword v{vtag}, v{vf+4}, s[{S_DBG}:{S_DBG+3}], 0 offen sc1')
    sfx = {1: 'dword', 2: 'dwordx2', 4: 'dwordx4'}[per]
    dst = f'v{vf}' if per == 1 else f'v[{vf}:{vf+per-1}]'
    e(f'buffer_load_{sfx} {dst}, v{vaddr}, s[{S_WS}:{S_WS+3}], s34 offen sc1')
    e('s_waitcnt vmcnt(0)')
    e(f'v_cmp_ne_u32 vcc, v{vtag}, v{vf}')
    for j in range(1, per):
        e(f'v_cmp_ne_u32 s[36:37], v{vtag}, v{vf+j}')
        e('s_or_b64 vcc, vcc, s[36:37]')
    if reload_tag:
        e(f'v_cmp_eq_u32 s[36:37], 0, v{vtag}')
        e('s_or_b64 vcc, vcc, s[36:37]')
    e('s_and_b64 vcc, vcc, exec')
    e(f's_cbranch_vccz {L}_d')
    e('s_add_u32 s41, s41, 1')
    e('s_cmp_gt_u32 s41, 2000000')
    e('s_cbranch_scc1 L_bail')
    e('s_sleep 1')
    e(f's_branch {L}')
    lab(L + '_d')
    e('s_mov_b64 exec, -1')

out.append('.amdgcn_target "amdgcn-amd-amdhsa--gfx950"')
out.append('.text')
out.append(f'.globl {NAME}')
out.append('.p2align 8')
out.append(f'.type {NAME},@function')
lab(NAME)
e('s_cmp_ge_u32 s2, 256')
e('s_cbranch_scc1 L_exit')
TS()
e(f's_load_dwordx2 s[44:45], s[0:1], {KA["ws"]}')
e(f's_load_dwordx2 s[46:47], s[0:1], {KA["dbg"]}')
e(f's_load_dwordx2 s[48:49], s[0:1], {KA["A_x"]}')
e('v_lshrrev_b32 v1, 6, v0')
e('v_and_b32 v2, 63, v0')
e('v_readfirstlane_b32 s3, v1')
e('v_lshrrev_b32 v3, 4, v2')
e('v_and_b32 v4, 15, v2')
e(f's_mov_b32 s40, {f32hex(CSC)}')
e('s_cmp_ge_u32 s3, 8')
e('s_cbranch_scc1 L_C')

e(f's_load_dwordx2 s[50:51], s[0:1], {KA["A_k"]}')
e(f's_load_dwordx2 s[52:53], s[0:1], {KA["A_v"]}')
e('s_waitcnt lgkmcnt(0)')
srd(S_WS, 44, WS_USED); srd(S_DBG, 46, 256)
srd(16, 50, 33554432); srd(20, 52, 33554432)
e('s_lshl_b32 s32, s2, 17')
e('s_lshl_b32 s33, s3, 14')
e('s_add_u32 s32, s32, s33')
e('v_lshlrev_b32 v5, 8, v3')
e('v_lshl_add_u32 v5, v4, 4, v5')
e('v_add_u32 v5, s32, v5')
e('s_mov_b32 s44, 0'); e('s_mov_b32 s45, 4096'); e('s_mov_b32 s46, 8192'); e('s_mov_b32 s47, 12288')
KB = 64
def kload(i, srdn):
    e(f'buffer_load_dwordx4 v[{KB+4*i}:{KB+4*i+3}], v5, s[{srdn}:{srdn+3}], s{44+i//4} offen offset:{(i%4)*1024} nt')
e('s_cmp_lg_u32 s3, 0')
e('s_cbranch_scc1 L_A_noinit')
e('v_lshlrev_b32 v6, 2, v2')
e('v_mov_b32 v7, 0')
e('ds_write_b32 v6, v7')
e('s_waitcnt lgkmcnt(0)')
lab('L_A_noinit')
for i in range(16):
    if i >= KDEPTH: e(f's_waitcnt vmcnt({KDEPTH-1})')
    kload(i, 16)
    if i == KDEPTH - 1: e('s_barrier')
TS()
def em():
    e('s_bfe_u32 s35, s2, 0x40003')
    e('s_lshl_b32 s34, s35, 5')
    if FLG_Q: e(f's_add_u32 s34, s34, {FLG_Q}')
VTAG = 8
poll_flags(em, 8, VTAG, 9, 10, reload_tag=True)
TS()
e(f'v_readfirstlane_b32 s38, v{VTAG}')
e('s_nop 1')
e(f'v_mov_b32 v{VTAG}, s38')
e('s_lshr_b32 s36, s2, 7')
e('s_lshl_b32 s34, s35, 13')
e('s_lshl_b32 s37, s36, 9')
e('s_add_u32 s34, s34, s37')
e(f's_add_u32 s34, s34, {QP}')
e('v_lshrrev_b32 v9, 5, v2')
e('v_lshlrev_b32 v9, 12, v9')
e('v_and_b32 v10, 31, v2')
e('v_lshl_add_u32 v9, v10, 4, v9')
for kq in range(4):
    e(f'buffer_load_dwordx4 v[{16+4*kq}:{19+4*kq}], v9, s[{S_WS}:{S_WS+3}], s34 offen offset:{kq*1024} sc1')
e('s_waitcnt vmcnt(0)')
for kq in range(1, 4):
    for j in range(4): e(f'v_add_f32 v{16+j}, v{16+j}, v{16+4*kq+j}')
e('v_cvt_pk_bf16_f32 v16, v16, v17')
e('v_cvt_pk_bf16_f32 v17, v18, v19')
e('s_lshl_b32 s37, s3, 10')
e(f's_add_u32 s37, s37, {L_AQ}')
e('v_lshlrev_b32 v9, 3, v2')
e('v_add_u32 v9, s37, v9')
e('ds_write_b64 v9, v[16:17]')
e('v_lshlrev_b32 v10, 4, v4')
e('v_add_u32 v10, s37, v10')
e('s_waitcnt lgkmcnt(0)')
e('ds_read_b128 v[48:51], v10')
e('ds_read_b128 v[52:55], v10 offset:256')
for k in range(32): e(f'v_mov_b32 v{16+k}, 0')
e('s_waitcnt lgkmcnt(0)')
for i in range(16):
    for j in range(4):
        for hq in range(2):
            e(f'v_dot2c_f32_bf16 v{16+2*i+hq}, v{KB+4*i+j}, v{48+4*hq+j}')
    kload(i, 20)
TS()
e('s_nop 3')
row_reduce([16+k for k in range(32)])
for hq in range(2):
    e(f'v_max_f32 v{56+hq}, v{16+hq}, v{18+hq}')
    for i in range(2, 16):
        e(f'v_max_f32 v{56+hq}, v{56+hq}, v{16+2*i+hq}')
    e(f'v_mul_f32 v{56+hq}, s40, v{56+hq}')
for i in range(16):
    for hq in range(2):
        e(f'v_fma_f32 v{16+2*i+hq}, v{16+2*i+hq}, s40, -v{56+hq}')
for k in range(32): e(f'v_exp_f32 v{16+k}, v{16+k}')
e('s_nop 0')
for hq in range(2):
    e(f'v_add_f32 v{58+hq}, v{16+hq}, v{18+hq}')
    for i in range(2, 16):
        e(f'v_add_f32 v{58+hq}, v{58+hq}, v{16+2*i+hq}')
AC = 48
e('v_mov_b32 v10, v56'); e('v_mov_b32 v11, v58'); e('v_mov_b32 v12, v57'); e('v_mov_b32 v13, v59')
for k in range(16): e(f'v_mov_b32 v{AC+k}, 0')
for i in range(16):
    e(f's_waitcnt vmcnt({15-i})')
    for j in range(4):
        unpack(14, 15, KB+4*i+j)
        for hq in range(2):
            e(f'v_fmac_f32 v{AC+hq*8+2*j}, v{16+2*i+hq}, v14')
            e(f'v_fmac_f32 v{AC+hq*8+2*j+1}, v{16+2*i+hq}, v15')
TS()
e('s_lshl_b32 s37, s3, 2')
e('v_add_u32 v6, s37, v3')
e('v_lshlrev_b32 v7, 10, v6')
e('v_lshl_add_u32 v7, v4, 5, v7')
e(f'ds_write_b128 v7, v[{AC}:{AC+3}] offset:{L_AO}')
e(f'ds_write_b128 v7, v[{AC+4}:{AC+7}] offset:{L_AO+16}')
e(f'ds_write_b128 v7, v[{AC+8}:{AC+11}] offset:{L_AO+512}')
e(f'ds_write_b128 v7, v[{AC+12}:{AC+15}] offset:{L_AO+528}')
e('v_lshlrev_b32 v6, 4, v6')
e(f'ds_write_b128 v6, v[10:13] offset:{L_AML}')
last_arriver(C_A, 8, 6, 7, 'L_A_done')
e('v_lshrrev_b32 v6, 5, v2')
e('v_lshlrev_b32 v7, 3, v6')
for s in range(32):
    e(f'ds_read_b64 v[{64+2*s}:{65+2*s}], v7 offset:{L_AML+s*16}')
e('s_waitcnt lgkmcnt(0)')
e('v_max_f32 v12, v64, v66')
for s in range(2, 32): e(f'v_max_f32 v12, v12, v{64+2*s}')
for s in range(32): e(f'v_sub_f32 v{64+2*s}, v{64+2*s}, v12')
for s in range(32): e(f'v_exp_f32 v{64+2*s}, v{64+2*s}')
e('v_mov_b32 v13, 0')
for s in range(32): e(f'v_fmac_f32 v13, v{64+2*s}, v{65+2*s}')
e('v_lshlrev_b32 v9, 4, v2')
for k in range(4): e(f'v_mov_b32 v{16+k}, 0')
for half in range(2):
    for s in range(16):
        e(f'ds_read_b128 v[{20+2*s - 0 if False else 20+4*(s%8)}:{23+4*(s%8)}], v9 offset:{L_AO+(half*16+s)*1024}') if False else None
    for q in range(2):
        for s in range(8):
            e(f'ds_read_b128 v[{20+4*s}:{23+4*s}], v9 offset:{L_AO+(half*16+q*8+s)*1024}')
        e('s_waitcnt lgkmcnt(0)')
        for s in range(8):
            sl = half*16+q*8+s
            for k in range(4):
                e(f'v_fmac_f32 v{16+k}, v{64+2*sl}, v{20+4*s+k}')
e('s_lshl_b32 s34, s2, 10')
e(f's_add_u32 s34, s34, {AP}')
e(f'buffer_store_dwordx4 v[16:19], v9, s[{S_WS}:{S_WS+3}], s34 offen sc1')
e('s_lshl_b32 s34, s2, 4')
e(f's_add_u32 s34, s34, {AML}')
e('v_and_b32 v6, 31, v2')
e('v_cmp_eq_u32 vcc, 0, v6')
e('s_and_saveexec_b64 s[36:37], vcc')
e(f'buffer_store_dwordx2 v[12:13], v7, s[{S_WS}:{S_WS+3}], s34 offen sc1')
e('s_mov_b64 exec, s[36:37]')
set_flag(FLG_AP, 2, VTAG, 6)
lab('L_A_done')
TS()
ts_dump('A')
e('s_endpgm')
nA = ts_n[0]

lab('L_C')
ts_n[0] = 1
e(f's_load_dwordx2 s[50:51], s[0:1], {KA["A_wq"]}')
e(f's_load_dwordx2 s[52:53], s[0:1], {KA["B_wq"]}')
e(f's_load_dwordx2 s[54:55], s[0:1], {KA["B_wuk"]}')
e(f's_load_dwordx2 s[56:57], s[0:1], {KA["B_ckv"]}')
e('s_sub_u32 s3, s3, 8') if not TSTAMP else None
e('s_waitcnt lgkmcnt(0)')
if TSTAMP:
    e('s_mov_b32 s63, s3'); e('s_sub_u32 s3, s3, 8')
srd(S_WS, 44, WS_USED); srd(S_DBG, 46, 256); srd(S_X, 48, 2304)
e('s_lshr_b32 s32, s2, 7')
e('s_cmp_eq_u32 s32, 0')
e('s_cselect_b32 s50, s50, s52')
e('s_cselect_b32 s51, s51, s53')
srd(16, 50, 4718592)
srd(20, 54, 4194304)
srd(24, 56, 8388608)
e('s_or_b32 s32, s2, s3')
e('s_cmp_lg_u32 s32, 0')
e('s_cbranch_scc1 L_C_notag')
e('s_memrealtime s[60:61]')
e('s_waitcnt lgkmcnt(0)')
e('s_or_b32 s60, s60, 1')
e('v_mov_b32 v6, 0')
e('v_mov_b32 v7, s60')
e('s_mov_b64 exec, 1')
e(f'buffer_store_dword v7, v6, s[{S_DBG}:{S_DBG+3}], 0 offen sc1')
e('s_mov_b64 exec, -1')
lab('L_C_notag')
e('s_and_b32 s33, s2, 3')
e('s_mul_i32 s33, s33, 144')
e('s_mul_i32 s34, s3, 18')
e('s_add_u32 s33, s33, s34')
e('v_lshrrev_b32 v5, 5, v2')
e('v_add_u32 v5, s33, v5')
e('v_lshlrev_b32 v7, 1, v5')
for i in range(9):
    for b in range(2):
        e(f'buffer_load_ushort v{40+2*i+b}, v7, s[{S_X}:{S_X+3}], 0 offen offset:{i*4+b*1152}')
e('s_bfe_u32 s35, s2, 0x50002')
e('s_lshl_b32 s35, s35, 8')
e('v_lshlrev_b32 v6, 13, v5')
e('v_and_b32 v8, 31, v2')
e('v_lshl_add_u32 v6, v8, 3, v6')
e('v_add_u32 v6, s35, v6')
e('s_mov_b32 s36, 0')
for i in range(9):
    e(f'buffer_load_dwordx2 v[{16+2*i}:{17+2*i}], v6, s[16:19], s36 offen nt')
    if i < 8: e('s_add_u32 s36, s36, 16384')
e('s_lshr_b32 s42, s2, 3')
e('s_and_b32 s43, s2, 7')
e('s_lshl_b32 s33, s43, 6')
e('s_lshl_b32 s34, s3, 3')
e('s_add_u32 s33, s33, s34')
e('v_add_u32 v9, s33, v3')
e('v_lshlrev_b32 v10, 13, v9')
e('s_lshl_b32 s34, s42, 8')
e('v_lshl_add_u32 v10, v4, 4, v10')
e('v_add_u32 v10, s34, v10')
e('s_mov_b32 s36, 32768')
e('buffer_load_dwordx4 v[64:67], v10, s[20:23], 0 offen nt')
e('buffer_load_dwordx4 v[68:71], v10, s[20:23], s36 offen nt')
e('s_cmp_ge_u32 s2, 128')
e('s_cbranch_scc1 L_C_nockv')
e('s_lshl_b32 s33, art, 0') if False else None
e('s_lshl_b32 s33, s2, 16')
e('s_lshl_b32 s34, s3, 13')
e('s_add_u32 s33, s33, s34')
e('v_lshlrev_b32 v11, 4, v2')
e('s_mul_i32 s34, s3, %d' % (8*RS))
e(f's_add_u32 s34, s34, {L_CKV}')
for i in range(8):
    e('s_mov_b32 m0, s34')
    e('s_nop 0')
    e('buffer_load_dwordx4 v11, s[24:27], s33 offen nt lds')
    if i < 7:
        e('s_add_u32 s33, s33, 1024'); e(f's_add_u32 s34, s34, {RS}')
lab('L_C_nockv')
e('s_barrier')
e('s_cmp_ge_u32 s2, 128')
e('s_cbranch_scc1 L_C_w2')
e('s_waitcnt vmcnt(10)')
e('s_branch L_C_w3')
lab('L_C_w2')
e('s_waitcnt vmcnt(2)')
lab('L_C_w3')
for k in range(18): e(f'v_lshlrev_b32 v{40+k}, 16, v{40+k}')
for k in range(8): e(f'v_mov_b32 v{72+k}, 0')
for i in range(9):
    for j in range(2):
        unpack(12, 13, 16+2*i+j)
        for b in range(2):
            e(f'v_fmac_f32 v{72+4*b+2*j}, v{40+2*i+b}, v12')
            e(f'v_fmac_f32 v{72+4*b+2*j+1}, v{40+2*i+b}, v13')
e('s_lshl_b32 s33, s3, 1')
e('v_lshrrev_b32 v12, 5, v2')
e('v_add_u32 v12, s33, v12')
e('v_lshlrev_b32 v12, 10, v12')
e('v_lshl_add_u32 v12, v8, 4, v12')
e(f'v_add_u32 v12, {L_RED}, v12')
e('ds_write_b128 v12, v[72:75]')
e('ds_write_b128 v12, v[76:79] offset:512')
VT = 14
e('v_mov_b32 v13, 0')
lt = uid('tag')
TS()
last_arriver(C_Q, 8, 12, 13, 'L_C_qdone')
e('v_lshlrev_b32 v12, 4, v2')
e(f'v_add_u32 v13, {L_RED}, v12')
for s in range(16):
    e(f'ds_read_b128 v[{64+8+4*s}:{67+8+4*s}], v13 offset:{s*1024}') if False else None
for q in range(2):
    for s in range(8):
        e(f'ds_read_b128 v[{16+4*s}:{19+4*s}], v13 offset:{(q*8+s)*1024}')
    e('s_waitcnt lgkmcnt(0)')
    if q == 0:
        for k in range(4): e(f'v_mov_b32 v{48+k}, v{16+k}')
        rng = range(1, 8)
    else: rng = range(8)
    for s in rng:
        for k in range(4): e(f'v_add_f32 v{48+k}, v{48+k}, v{16+4*s+k}')
e('s_lshl_b32 s34, s2, 10')
e(f's_add_u32 s34, s34, {QP}')
e(f'buffer_store_dwordx4 v[48:51], v12, s[{S_WS}:{S_WS+3}], s34 offen sc1')
lab(lt)
e('v_mov_b32 v13, 0')
e(f'buffer_load_dword v{VT}, v13, s[{S_DBG}:{S_DBG+3}], 0 offen sc1')
e('s_waitcnt vmcnt(0)')
e(f'v_readfirstlane_b32 s33, v{VT}')
e('s_nop 0')
e('s_cmp_eq_u32 s33, 0')
e(f's_cbranch_scc1 {lt}')
set_flag(FLG_Q, 2, VT, 13)
lab('L_C_qdone')
TS()
def em():
    e('s_add_u32 s34, s42, 32')
    e('s_lshl_b32 s34, s34, 4')
    if FLG_Q: e(f's_add_u32 s34, s34, {FLG_Q}')
poll_flags(em, 4, VT, 12, 16, reload_tag=True)
e(f'v_readfirstlane_b32 s38, v{VT}')
e('s_nop 1')
e(f'v_mov_b32 v{VT}, s38')
TS()
e('s_add_u32 s34, s42, 32')
e('s_lshl_b32 s34, s34, 12')
e(f's_add_u32 s34, s34, {QP}')
e('v_lshlrev_b32 v12, 4, v2')
for kq in range(4):
    e(f'buffer_load_dwordx4 v[{16+4*kq}:{19+4*kq}], v12, s[{S_WS}:{S_WS+3}], s34 offen offset:{kq*1024} sc1')
e('s_waitcnt vmcnt(0)')
for kq in range(1, 4):
    for j in range(4): e(f'v_add_f32 v{16+j}, v{16+j}, v{16+4*kq+j}')
e('v_cvt_pk_bf16_f32 v20, v16, v17')
e('v_cvt_pk_bf16_f32 v21, v18, v19')
unpack(16, 17, 20); unpack(18, 19, 21)
e('s_lshl_b32 s33, s3, 10')
e(f's_add_u32 s33, s33, {L_CQ}')
e('v_add_u32 v13, s33, v12')
e('ds_write_b128 v13, v[16:19]')
e('v_lshlrev_b32 v13, 5, v4')
e('v_add_u32 v13, s33, v13')
e('s_waitcnt lgkmcnt(0)')
e('ds_read_b128 v[32:35], v13')
e('ds_read_b128 v[36:39], v13 offset:16')
e('ds_read_b128 v[40:43], v13 offset:512')
e('ds_read_b128 v[44:47], v13 offset:528')
for k in range(4): e(f'v_mov_b32 v{48+k}, 0')
e('s_waitcnt lgkmcnt(0)')
for i in range(2):
    for j in range(4):
        unpack(12, 13, 64+4*i+j)
        for b in range(2):
            e(f'v_fmac_f32 v{48+2*i+b}, v{32+8*b+2*j}, v12')
            e(f'v_fmac_f32 v{48+2*i+b}, v{32+8*b+2*j+1}, v13')
e('s_nop 1')
row_reduce([48, 49, 50, 51])
e('v_cmp_eq_u32 vcc, 1, v4'); e('s_nop 1'); e('v_cndmask_b32 v48, v48, v49, vcc')
e('v_cmp_eq_u32 vcc, 2, v4'); e('s_nop 1'); e('v_cndmask_b32 v48, v48, v50, vcc')
e('v_cmp_eq_u32 vcc, 3, v4'); e('s_nop 1'); e('v_cndmask_b32 v48, v48, v51, vcc')
e('v_cvt_pk_bf16_f32 v48, v48, v48')
e('v_and_b32 v12, 1, v4')
e('v_lshlrev_b32 v12, 15, v12')
e('v_lshrrev_b32 v13, 1, v4')
e('v_lshl_add_u32 v13, v13, 2, v9')
e('v_lshl_add_u32 v12, v13, 1, v12')
e('s_lshl_b32 s34, s42, 10')
e(f's_add_u32 s34, s34, {QABS}')
e('v_cmp_gt_u32 vcc, 4, v4')
e('s_and_saveexec_b64 s[36:37], vcc')
e(f'buffer_store_short v48, v12, s[{S_WS}:{S_WS+3}], s34 offen sc1')
e('s_mov_b64 exec, s[36:37]')
e(f's_load_dwordx2 s[50:51], s[0:1], {KA["B_wuv"]}')
e('s_waitcnt lgkmcnt(0)')
srd(20, 50, 4194304)
e('s_waitcnt vmcnt(0)')
last_arriver(C_U, 8, 12, 13, 'L_C_udone')
set_flag(FLG_U, 2, VT, 13)
lab('L_C_udone')
e('s_mov_b32 s36, 32768')
e('buffer_load_dwordx4 v[64:67], v10, s[20:23], 0 offen nt')
e('buffer_load_dwordx4 v[68:71], v10, s[20:23], s36 offen nt')
TS()
e('s_cmp_ge_u32 s2, 128')
e('s_cbranch_scc1 L_C_noB')
def em():
    e(f's_mov_b32 s34, {FLG_U}')
poll_flags(em, 256, VT, 12, 16)
TS()
e('s_lshr_b32 s33, s2, 6')
e('s_lshr_b32 s35, s3, 2')
e('s_and_b32 s36, s3, 3')
e('s_lshl_b32 s34, s33, 5')
e('s_lshl_b32 s37, s35, 4')
e('s_add_u32 s34, s34, s37')
e('s_lshl_b32 s34, s34, 10')
e(f's_add_u32 s34, s34, {QABS}')
e('v_lshlrev_b32 v12, 10, v4')
e('v_lshl_add_u32 v12, v3, 4, v12')
for ks in range(16):
    e(f'buffer_load_dwordx4 v[{72+4*ks}:{75+4*ks}], v12, s[{S_WS}:{S_WS+3}], s34 offen offset:{ks*64} sc1') if ks < 14 else None
    if ks >= 14:
        e(f'buffer_load_dwordx4 v[{16+4*(ks-14)}:{19+4*(ks-14)}], v12, s[{S_WS}:{S_WS+3}], s34 offen offset:{ks*64} sc1')
def qreg(ks): return 72+4*ks if ks < 14 else 16+4*(ks-14)
e('s_waitcnt vmcnt(0)')
cbar(0, 12, 13)
e('s_lshl_b32 s37, s36, 4')
e('v_add_u32 v12, s37, v4')
e(f'v_mul_u32_u24 v12, {RS}, v12')
e('v_lshl_add_u32 v12, v3, 4, v12')
e(f'v_add_u32 v12, {L_CKV}, v12')
for k in range(4): e(f'v_mov_b32 v{24+k}, 0')
for half in range(4):
    for q in range(4):
        ks = half*4+q
        e(f'ds_read_b128 v[{28+4*q}:{31+4*q}], v12 offset:{ks*64}')
    e('s_waitcnt lgkmcnt(0)')
    for q in range(4):
        ks = half*4+q
        e(f'v_mfma_f32_16x16x32_bf16 v[24:27], v[{28+4*q}:{31+4*q}], v[{qreg(ks)}:{qreg(ks)+3}], v[24:27]')
    e('s_nop 3')
e('s_nop 8')
e('s_lshl_b32 s37, s35, 12')
e('s_lshl_b32 s34, s36, 6')
e('s_add_u32 s37, s37, s34')
e('v_lshlrev_b32 v12, 8, v4')
e('v_lshl_add_u32 v12, v3, 4, v12')
e('v_add_u32 v12, s37, v12')
e(f'v_add_u32 v12, {L_S}, v12')
e('ds_write_b128 v12, v[24:27]')
cbar(1, 12, 13)
e('s_lshl_b32 s37, s3, 2')
e('v_add_u32 v12, s37, v3')
e('v_lshlrev_b32 v13, 8, v12')
e('v_lshl_add_u32 v13, v4, 4, v13')
e(f'v_add_u32 v13, {L_S}, v13')
e('ds_read_b128 v[16:19], v13')
e('s_waitcnt lgkmcnt(0)')
e('v_max_f32 v20, v16, v17')
e('v_max3_f32 v20, v20, v18, v19')
e('s_nop 1')
row_reduce([20], 'max')
e('v_mul_f32 v20, s40, v20')
for k in range(4): e(f'v_fma_f32 v{16+k}, v{16+k}, s40, -v20')
for k in range(4): e(f'v_exp_f32 v{16+k}, v{16+k}')
e('s_nop 0')
e('v_add_f32 v21, v16, v17')
e('v_add_f32 v22, v18, v19')
e('v_add_f32 v21, v21, v22')
e('v_cvt_pk_bf16_f32 v22, v16, v17')
e('v_cvt_pk_bf16_f32 v23, v18, v19')
row_reduce([21], 'add')
e('v_mul_u32_u24 v13, 144, v12')
e('v_lshl_add_u32 v13, v4, 3, v13')
e(f'v_add_u32 v13, {L_P}, v13')
e('ds_write_b64 v13, v[22:23]')
e('s_lshl_b32 s34, s2, 8')
e(f's_add_u32 s34, s34, {BML}')
e('v_lshlrev_b32 v13, 3, v12')
e('v_cmp_eq_u32 vcc, 0, v4')
e('s_and_saveexec_b64 s[36:37], vcc')
e(f'buffer_store_dwordx2 v[20:21], v13, s[{S_WS}:{S_WS+3}], s34 offen sc1')
e('s_mov_b64 exec, s[36:37]')
cbar(2, 12, 13)
e('v_mul_u32_u24 v12, 144, v4')
e('v_lshl_add_u32 v12, v3, 4, v12')
e(f'v_add_u32 v12, {L_P}, v12')
for hh in range(2):
    for ks in range(2):
        r = 16 + (hh*2+ks)*4
        e(f'ds_read_b128 v[{r}:{r+3}], v12 offset:{hh*16*144+ks*64}')
e('v_lshrrev_b32 v13, 2, v4')
e('v_lshl_add_u32 v13, v3, 3, v13')
e(f'v_mul_u32_u24 v13, {RS}, v13')
e('v_and_b32 v12, 3, v4')
e('v_lshl_add_u32 v13, v12, 3, v13')
e('s_lshl_b32 s37, s3, 7')
e(f's_add_u32 s37, s37, {L_CKV}')
e('v_add_u32 v13, s37, v13')
for ct in range(4):
    for ks in range(2):
        for t in range(2):
            r = 32 + ((ct*2+ks)*2+t)*2
            e(f'ds_read_b64_tr_b16 v[{r}:{r+1}], v13 offset:{(ks*32+t*4)*RS + ct*32}')
for k in range(32): e(f'v_mov_b32 v{72+k}, 0')
e('s_waitcnt lgkmcnt(0)')
for ct in range(4):
    for hh in range(2):
        for ks in range(2):
            a = 32 + (ct*2+ks)*4
            bq = 16 + (hh*2+ks)*4
            d = 72 + (ct*2+hh)*4
            e(f'v_mfma_f32_16x16x32_bf16 v[{d}:{d+3}], v[{a}:{a+3}], v[{bq}:{bq+3}], v[{d}:{d+3}]')
e('s_nop 15')
e('s_lshl_b32 s34, s2, 16')
e(f's_add_u32 s34, s34, {BP}')
e('v_lshlrev_b32 v12, 11, v4')
e('v_lshl_add_u32 v12, v3, 4, v12')
e('s_lshl_b32 s37, s3, 8')
e('v_add_u32 v12, s37, v12')
e('v_add_u32 v13, 32768, v12')
for ct in range(4):
    for hh in range(2):
        d = 72 + (ct*2+hh)*4
        e(f'buffer_store_dwordx4 v[{d}:{d+3}], v{12+hh}, s[{S_WS}:{S_WS+3}], s34 offen offset:{ct*64} sc1')
e('s_waitcnt vmcnt(0)')
last_arriver(C_BP, 8, 12, 13, 'L_C_bdone')
set_flag(FLG_BP, 2, VT, 13)
lab('L_C_bdone')
TS()
lab('L_C_noB')
e(f's_load_dwordx2 s[50:51], s[0:1], {KA["A_wo"]}')
e(f's_load_dwordx2 s[52:53], s[0:1], {KA["B_wo"]}')
def task_decode(st):
    e(f's_cmp_ge_u32 s{st}, 144')
    e('s_cselect_b32 s58, 1, 0')
    e('s_mul_i32 s59, s58, 144')
    e(f's_sub_u32 s59, s{st}, s59')
    e('s_and_b32 s60, s59, 15')
    e('s_lshr_b32 s59, s59, 4')
def o_prefetch(st, reg):
    task_decode(st)
    e('s_cmp_eq_u32 s58, 0')
    e('s_cselect_b32 s54, s50, s52')
    e('s_cselect_b32 s55, s51, s53')
    srd(24, 54, 4718592)
    e('s_lshl_b32 s33, s60, 8')
    e('s_lshl_b32 s34, s3, 5')
    e('s_add_u32 s33, s33, s34')
    e('v_lshrrev_b32 v12, 3, v2')
    e('v_add_u32 v12, s33, v12')
    e('s_movk_i32 s34, 1152')
    e('v_mul_lo_u32 v12, v12, s34')
    e('v_and_b32 v13, 7, v2')
    e('v_lshl_add_u32 v12, v13, 4, v12')
    e('s_lshl_b32 s34, s59, 7')
    for i in range(4):
        e(f'buffer_load_dwordx4 v[{reg+4*i}:{reg+4*i+3}], v12, s[24:27], s34 offen nt')
        if i < 3: e(f's_add_u32 s34, s34, {8*1152}')
e('s_waitcnt lgkmcnt(0)')
o_prefetch(2, 96)
e('s_sub_u32 s61, s2, 128')
e('s_cmp_lt_u32 s61, 32')
e('s_cbranch_scc0 L_C_not2')
e('s_add_u32 s61, s61, 256')
o_prefetch(61, 112)
lab('L_C_not2')
def em():
    e(f's_mov_b32 s34, {FLG_BP}')
poll_flags(em, 128, VT, 12, 16)
TS()
e('s_lshr_b32 s33, s3, 2')
e('s_and_b32 s35, s3, 3')
e('s_lshl_b32 s34, s33, 6')
e('v_add_u32 v12, s34, v2')
e('v_lshlrev_b32 v12, 5, v12')
e('v_add_u32 v12, s42, v12')
e('v_lshlrev_b32 v12, 3, v12')
e(f's_mov_b32 s34, {BML}')
e(f'buffer_load_dwordx2 v[40:41], v12, s[{S_WS}:{S_WS+3}], s34 offen sc1')
e('s_lshl_b32 s34, s35, 4')
e('v_add_u32 v15, s34, v3')
e('s_lshl_b32 s34, s33, 6')
e('v_add_u32 v13, s34, v15')
e('v_lshlrev_b32 v13, 5, v13')
e('v_add_u32 v13, s42, v13')
e('v_lshlrev_b32 v13, 11, v13')
e('v_lshl_add_u32 v13, v4, 4, v13')
e('s_lshl_b32 s34, s43, 8')
e(f's_add_u32 s34, s34, {BP}')
for i in range(4):
    e(f'buffer_load_dwordx4 v[{16+4*i}:{19+4*i}], v13, s[{S_WS}:{S_WS+3}], s34 offen sc1')
    if i < 3: e(f's_add_u32 s34, s34, {4*32*2048}')
e('s_waitcnt vmcnt(4)')
e('v_mov_b32 v42, v40')
e('s_nop 1')
row_reduce([42], 'max')
xrow_reduce([42], [43], 'max')
e('v_sub_f32 v40, v40, v42')
e('v_exp_f32 v40, v40')
e('s_nop 0')
e('v_mul_f32 v44, v40, v41')
e('s_nop 1')
row_reduce([44], 'add')
xrow_reduce([44], [43], 'add')
e('v_rcp_f32 v44, v44')
e('s_nop 0')
e('v_mul_f32 v40, v40, v44')
for i in range(4):
    e(f'v_add_u32 v45, {4*i}, v15')
    e('v_lshlrev_b32 v45, 2, v45')
    e(f'ds_bpermute_b32 v{48+i}, v45, v40')
e('s_waitcnt vmcnt(0) lgkmcnt(0)')
for k in range(4): e(f'v_mov_b32 v{52+k}, 0')
for i in range(4):
    for k in range(4): e(f'v_fmac_f32 v{52+k}, v{48+i}, v{16+4*i+k}')
xrow_reduce([52, 53, 54, 55], [56, 57, 58, 59], 'add')
e('s_lshl_b32 s34, s3, 8')
e(f's_add_u32 s34, s34, {L_RED}')
e('v_lshlrev_b32 v12, 4, v4')
e('v_add_u32 v12, s34, v12')
e('ds_write_b128 v12, v[52:55]')
cbar(3, 12, 13)
e('s_lshl_b32 s34, s3, 3')
e('v_add_u32 v12, s34, v3')
e('v_lshlrev_b32 v12, 2, v12')
e(f'v_add_u32 v12, {L_RED}, v12')
for i in range(2):
    for b in range(2):
        for q in range(4):
            e(f'ds_read_b32 v{16+(i*2+b)*4+q}, v12 offset:{(b*4+q)*256+i*16}')
e('s_waitcnt lgkmcnt(0)')
for ib in range(4):
    for q in range(1, 4): e(f'v_add_f32 v{16+ib*4}, v{16+ib*4}, v{16+ib*4+q}')
for k in range(16): e(f'v_mov_b32 v{32+k}, 0')
for i in range(2):
    for j in range(4):
        unpack(12, 13, 64+4*i+j)
        for b in range(2):
            e(f'v_fmac_f32 v{32+8*b+2*j}, v{16+(i*2+b)*4}, v12')
            e(f'v_fmac_f32 v{32+8*b+2*j+1}, v{16+(i*2+b)*4}, v13')
xrow_reduce([32+k for k in range(16)], [48+k for k in range(16)], 'add')
e('s_lshl_b32 s34, s3, 10')
e(f's_add_u32 s34, s34, {L_RED+4096}')
e('v_lshlrev_b32 v12, 5, v4')
e('v_add_u32 v12, s34, v12')
e('s_mov_b64 exec, 0xffff')
e('ds_write_b128 v12, v[32:35]')
e('ds_write_b128 v12, v[36:39] offset:16')
e('ds_write_b128 v12, v[40:43] offset:512')
e('ds_write_b128 v12, v[44:47] offset:528')
e('s_mov_b64 exec, -1')
last_arriver(C_V, 8, 12, 13, 'L_C_vdone')
e('v_lshlrev_b32 v12, 4, v2')
e(f'v_add_u32 v13, {L_RED+4096}, v12')
for s in range(8): e(f'ds_read_b128 v[{16+4*s}:{19+4*s}], v13 offset:{s*1024}')
e('s_waitcnt lgkmcnt(0)')
for s in range(1, 8):
    for k in range(4): e(f'v_add_f32 v{16+k}, v{16+k}, v{16+4*s+k}')
e('s_lshl_b32 s34, s2, 10')
e(f's_add_u32 s34, s34, {CTXP}')
e(f'buffer_store_dwordx4 v[16:19], v12, s[{S_WS}:{S_WS+3}], s34 offen sc1')
set_flag(FLG_V, 2, VT, 13)
lab('L_C_vdone')
TS()
def o_stage(st, reg, cnt, bark, LOV, LRD):
    task_decode(st)
    Lb, Lj, Ld = uid('ob'), uid('oj'), uid('od')
    e('s_cmp_eq_u32 s58, 0')
    e(f's_cbranch_scc0 {Lb}')
    for b in range(2):
        def em():
            e(f's_add_u32 s34, s60, {b*16}')
            e('s_lshl_b32 s34, s34, 5')
            e(f's_add_u32 s34, s34, {FLG_AP}')
        poll_flags(em, 8, VT, 12, 16)
    e('s_lshr_b32 s33, s3, 2')
    e('s_and_b32 s35, s3, 3')
    e('s_lshl_b32 s34, s33, 4')
    e('s_add_u32 s34, s34, s60')
    e('s_lshl_b32 s36, s34, 13')
    e('s_lshl_b32 s37, s35, 8')
    e('s_add_u32 s36, s36, s37')
    e(f's_add_u32 s36, s36, {AP}')
    e('v_lshlrev_b32 v12, 2, v2')
    e('s_add_u32 s37, s36, 4096')
    for c in range(8):
        e(f'buffer_load_dword v{16+c}, v12, s[{S_WS}:{S_WS+3}], s{36 if c<4 else 37} offen offset:{(c%4)*1024} sc1')
    e('s_lshl_b32 s36, s34, 7')
    e('s_lshr_b32 s37, s35, 1')
    e('s_lshl_b32 s37, s37, 3')
    e('s_add_u32 s36, s36, s37')
    e(f's_add_u32 s36, s36, {AML}')
    e('v_mov_b32 v12, 0')
    for c in range(8):
        e(f'buffer_load_dwordx2 v[{24+2*c}:{25+2*c}], v12, s[{S_WS}:{S_WS+3}], s36 offen offset:{c*16} sc1')
    e('s_waitcnt vmcnt(0)')
    e('v_max_f32 v13, v24, v26')
    for c in range(2, 8): e(f'v_max_f32 v13, v13, v{24+2*c}')
    for c in range(8): e(f'v_sub_f32 v{24+2*c}, v{24+2*c}, v13')
    for c in range(8): e(f'v_exp_f32 v{24+2*c}, v{24+2*c}')
    e('v_mov_b32 v40, 0'); e('v_mov_b32 v41, 0')
    for c in range(8):
        e(f'v_fmac_f32 v40, v{24+2*c}, v{25+2*c}')
        e(f'v_fmac_f32 v41, v{24+2*c}, v{16+c}')
    e('v_rcp_f32 v40, v40')
    e('s_nop 0')
    e('v_mul_f32 v41, v41, v40')
    e(f's_branch {Lj}')
    lab(Lb)
    def em():
        e('s_lshl_b32 s34, s60, 6')
        e(f's_add_u32 s34, s34, {FLG_V}')
    poll_flags(em, 16, VT, 12, 16)
    e('s_lshr_b32 s33, s3, 2')
    e('s_and_b32 s35, s3, 3')
    e('s_lshr_b32 s37, s35, 1')
    e('s_lshl_b32 s34, s60, 1')
    e('s_add_u32 s34, s34, s37')
    e('s_lshl_b32 s36, s34, 13')
    e('s_lshl_b32 s37, s33, 9')
    e('s_add_u32 s36, s36, s37')
    e('s_and_b32 s37, s35, 1')
    e('s_lshl_b32 s37, s37, 8')
    e('s_add_u32 s36, s36, s37')
    e(f's_add_u32 s36, s36, {CTXP}')
    e('v_lshlrev_b32 v12, 2, v2')
    e('s_add_u32 s37, s36, 4096')
    for c in range(8):
        e(f'buffer_load_dword v{16+c}, v12, s[{S_WS}:{S_WS+3}], s{36 if c<4 else 37} offen offset:{(c%4)*1024} sc1')
    e('s_waitcnt vmcnt(0)')
    e('v_mov_b32 v41, v16')
    for c in range(1, 8): e(f'v_add_f32 v41, v41, v{16+c}')
    lab(Lj)
    e('v_cvt_pk_bf16_f32 v41, v41, v41')
    e('v_lshlrev_b32 v41, 16, v41')
    e('s_lshl_b32 s34, s3, 8')
    e(f's_add_u32 s34, s34, {LOV}')
    e('v_lshlrev_b32 v12, 2, v2')
    e('v_add_u32 v12, s34, v12')
    e('ds_write_b32 v12, v41')
    cbar(bark, 12, 13)
    e('s_lshl_b32 s34, s3, 5')
    e('v_lshrrev_b32 v12, 3, v2')
    e('v_add_u32 v12, s34, v12')
    e('v_lshlrev_b32 v12, 2, v12')
    e(f'v_add_u32 v12, {LOV}, v12')
    for i in range(4):
        for b in range(2):
            e(f'ds_read_b32 v{16+2*i+b}, v12 offset:{b*1024+i*32}')
    for k in range(16): e(f'v_mov_b32 v{32+k}, 0')
    e('s_waitcnt lgkmcnt(0)')
    for i in range(4):
        for j in range(4):
            unpack(12, 13, reg+4*i+j)
            for b in range(2):
                e(f'v_fmac_f32 v{32+8*b+2*j}, v{16+2*i+b}, v12')
                e(f'v_fmac_f32 v{32+8*b+2*j+1}, v{16+2*i+b}, v13')
    for k in range(16): e(f'v_add_f32_dpp v{32+k}, v{32+k}, v{32+k} row_ror:8 row_mask:0xf bank_mask:0xf')
    xrow_reduce([32+k for k in range(16)], [48+k for k in range(16)], 'add')
    e('s_lshl_b32 s34, s3, 9')
    e(f's_add_u32 s34, s34, {LRD}')
    e('v_lshlrev_b32 v12, 5, v2')
    e('v_add_u32 v12, s34, v12')
    e('s_mov_b64 exec, 0xff')
    e('ds_write_b128 v12, v[32:35]')
    e('ds_write_b128 v12, v[36:39] offset:16')
    e('ds_write_b128 v12, v[40:43] offset:256')
    e('ds_write_b128 v12, v[44:47] offset:272')
    e('s_mov_b64 exec, -1')
    last_arriver(cnt, 8, 12, 13, Ld)
    e('v_lshlrev_b32 v12, 3, v2')
    e(f'v_add_u32 v13, {LRD}, v12')
    for s in range(8): e(f'ds_read_b64 v[{16+2*s}:{17+2*s}], v13 offset:{s*512}')
    e('s_waitcnt lgkmcnt(0)')
    for s in range(1, 8):
        e(f'v_add_f32 v16, v16, v{16+2*s}'); e(f'v_add_f32 v17, v17, v{17+2*s}')
    e(f's_lshl_b32 s34, s{st}, 9')
    e(f's_add_u32 s34, s34, {OUTP}')
    e(f'buffer_store_dwordx2 v[16:17], v12, s[{S_WS}:{S_WS+3}], s34 offen sc1')
    set_flag(FLG_O, st, VT, 13)
    lab(Ld)
e('s_waitcnt vmcnt(0)') if False else None
o_stage(2, 96, C_O, 4, L_OV, L_RED+16384)
TS()
e('s_sub_u32 s61, s2, 128')
e('s_cmp_lt_u32 s61, 32')
e('s_cbranch_scc0 L_C_not2b')
e('s_add_u32 s61, s61, 256')
o_stage(61, 112, C_O2, 5, L_OV+2048, L_RED+20480)
lab('L_C_not2b')
TS()
e('s_sub_u32 s61, s2, 240')
e('s_cmp_lt_u32 s61, 9')
e('s_cbranch_scc0 L_C_end')
e('s_cmp_eq_u32 s3, 7')
e('s_cbranch_scc0 L_C_end')
e(f's_load_dwordx2 s[50:51], s[0:1], {KA["gate"]}')
e(f's_load_dwordx2 s[52:53], s[0:1], {KA["out"]}')
e('s_waitcnt lgkmcnt(0)')
srd(20, 50, 1152); srd(24, 52, 2304)
e('v_lshlrev_b32 v12, 1, v2')
for k in range(9):
    e(f'buffer_load_ushort v{16+k}, v12, s[20:23], 0 offen offset:{k*128}')
    e(f'buffer_load_ushort v{32+k}, v12, s[{S_X}:{S_X+3}], 0 offen offset:{k*128}')
    e(f'buffer_load_ushort v{48+k}, v12, s[{S_X}:{S_X+3}], 0 offen offset:{k*128+1152}')
e('s_waitcnt vmcnt(0)')
e('v_mov_b32 v60, 0'); e('v_mov_b32 v61, 0')
for k in range(9):
    e(f'v_lshlrev_b32 v{16+k}, 16, v{16+k}')
    e(f'v_lshlrev_b32 v{32+k}, 16, v{32+k}')
    e(f'v_lshlrev_b32 v{48+k}, 16, v{48+k}')
    e(f'v_mul_f32 v{32+k}, v{32+k}, v{16+k}')
    e(f'v_mul_f32 v{48+k}, v{48+k}, v{16+k}')
    e(f'v_cvt_pk_bf16_f32 v62, v{32+k}, v{48+k}')
    unpack(63, 64, 62)
    e('v_add_f32 v60, v60, v63'); e('v_add_f32 v61, v61, v64')
e('s_nop 1')
row_reduce([60, 61], 'add')
xrow_reduce([60, 61], [62, 63], 'add')
e('v_cvt_pk_bf16_f32 v62, v60, v61')
unpack(60, 61, 62)
e(f's_mov_b32 s33, {f32hex(-1.4426950408889634)}')
e('v_mul_f32 v60, s33, v60'); e('v_mul_f32 v61, s33, v61')
e('v_exp_f32 v60, v60'); e('v_exp_f32 v61, v61'); e('s_nop 0')
e('v_add_f32 v60, 1.0, v60'); e('v_add_f32 v61, 1.0, v61')
e('v_rcp_f32 v60, v60'); e('v_rcp_f32 v61, v61'); e('s_nop 0')
e('v_cvt_pk_bf16_f32 v62, v60, v61')
unpack(60, 61, 62)
e('v_cmp_le_u32 vcc, 32, v2'); e('s_nop 1')
e('v_cndmask_b32 v60, v60, v61, vcc')
for m in range(2):
    def em():
        e('s_lshl_b32 s34, s61, 6')
        e(f's_add_u32 s34, s34, {FLG_O + m*144*4}')
    poll_flags(em, 16, VT, 12, 16)
e('v_lshlrev_b32 v12, 3, v2')
e('s_lshl_b32 s34, s61, 13')
e(f's_add_u32 s34, s34, {OUTP}')
for grp in range(4):
    for s in range(8):
        t = grp*8+s
        e(f'buffer_load_dwordx2 v[{64 - 48 + 2*t if False else 16+2*(t%16)}:{17+2*(t%16)}], v12, s[{S_WS}:{S_WS+3}], s34 offen offset:{s*512} sc1') if grp < 2 else \
        e(f'buffer_load_dwordx2 v[{66+2*(t%16)}:{67+2*(t%16)}], v12, s[{S_WS}:{S_WS+3}], s34 offen offset:{s*512} sc1')
    if grp == 1: e(f's_add_u32 s34, s34, {144*512 - 4096}')
    else: e('s_add_u32 s34, s34, 4096')
e('s_waitcnt vmcnt(0)')
for s in range(1, 16):
    e(f'v_add_f32 v16, v16, v{16+2*s}'); e(f'v_add_f32 v17, v17, v{17+2*s}')
    e(f'v_add_f32 v66, v66, v{66+2*s}'); e(f'v_add_f32 v67, v67, v{67+2*s}')
e('v_cvt_pk_bf16_f32 v62, v16, v17'); unpack(16, 17, 62)
e('v_cvt_pk_bf16_f32 v62, v66, v67'); unpack(66, 67, 62)
e('v_sub_f32 v61, 1.0, v60')
e('v_cvt_pk_bf16_f32 v62, v61, v61'); e('v_lshlrev_b32 v61, 16, v62')
e('v_mul_f32 v16, v60, v16'); e('v_mul_f32 v17, v60, v17')
e('v_cvt_pk_bf16_f32 v62, v16, v17'); unpack(16, 17, 62)
e('v_mul_f32 v66, v61, v66'); e('v_mul_f32 v67, v61, v67')
e('v_cvt_pk_bf16_f32 v62, v66, v67'); unpack(66, 67, 62)
e('v_add_f32 v16, v16, v66'); e('v_add_f32 v17, v17, v67')
e('v_cvt_pk_bf16_f32 v62, v16, v17')
e('v_lshrrev_b32 v12, 5, v2')
e('v_mul_u32_u24 v12, 1152, v12')
e('v_and_b32 v13, 31, v2')
e('v_lshl_add_u32 v12, v13, 2, v12')
e('s_lshl_b32 s34, s61, 7')
e('buffer_store_dword v62, v12, s[24:27], s34 offen')
lab('L_C_end')
TS()
if TSTAMP: e('s_mov_b32 s3, s63')
ts_dump('C')
e('s_endpgm')
lab('L_bail')
e('s_endpgm')
lab('L_exit')
e('s_endpgm')
out += ['.section .rodata,"a"', '.p2align 6', f'.amdhsa_kernel {NAME}', '  .amdhsa_next_free_vgpr 128', '  .amdhsa_next_free_sgpr 102',
  '  .amdhsa_accum_offset 128', '  .amdhsa_group_segment_fixed_size 0', '  .amdhsa_kernarg_size 120', '  .amdhsa_user_sgpr_count 2',
  '  .amdhsa_user_sgpr_kernarg_segment_ptr 1', '  .amdhsa_system_sgpr_workgroup_id_x 1', '.end_amdhsa_kernel']
open(sys.argv[1], 'w').write(HEADER + f'; @launch grid=(256,1,1) block=(1024,1,1) lds={(L_END+255)//256*256}\n' + '\n'.join(out) + '\n')
print('LDS', L_END, 'stamps', nA, ts_n[0])
```

```python
import sys, struct, re, os

REF = open('gated_mix__gqa_block_cached__compressed_kv_cla__decode.s.ref').read()
HEADER = REF.split('; Override')[0]
NAME = 'gated_mix__gqa_block_cached__compressed_kv_cla__decode_kernel'
TSTAMP = int(os.environ.get('TSTAMP', '0'))
KDEPTH = int(os.environ.get('KDEPTH', '4'))
VDEPTH = int(os.environ.get('VDEPTH', '4'))
NOA = int(os.environ.get('NOA', '0'))
SLEEP = int(os.environ.get('SLEEP', '4'))

FLG_Q, FLG_U, FLG_BP, FLG_V, FLG_AP, FLG_O = 0x0000, 0x0400, 0x0800, 0x0C00, 0x1000, 0x1400
QP   = 0x010000
QABS = 0x050000
AP   = 0x060000
AML  = 0x0A0000
BML  = 0x0B0000
CTXP = 0x0C0000
OUTP = 0x100000
TSB  = 0x180000
BP   = 0x200000
WS_USED = 0xA00000

CSC = 0.08838834764831845 * 1.4426950408889634
def f32hex(x): return '0x%08x' % struct.unpack('<I', struct.pack('<f', x))[0]

out = []
def e(s):
    m = re.search(r'offset:(\d+)', s)
    if m and s.startswith('buffer_'): assert int(m.group(1)) < 4096, s
    if m and s.startswith('ds_') and 'swizzle' not in s: assert int(m.group(1)) < 65536, s
    out.append('  ' + s)
def lab(s): out.append(s + ':')
_uid = [0]
def uid(p):
    _uid[0] += 1
    return f'L_{p}_{_uid[0]}'

KA = dict(A_x=0, A_k=8, A_v=16, A_wq=24, A_wo=32, B_x=40, B_ckv=48, B_wq=56, B_wuk=64, B_wuv=72, B_wo=80, gate=88, out=96, dbg=104, ws=112)

def srd(s, plo, nbytes):
    e(f's_mov_b32 s{s}, s{plo}')
    e(f's_and_b32 s{s+1}, s{plo+1}, 0xffff')
    e(f's_mov_b32 s{s+2}, {nbytes}')
    e(f's_mov_b32 s{s+3}, 0x20000')

def unpack(lo, hi, src):
    e(f'v_lshlrev_b32 v{lo}, 16, v{src}')
    e(f'v_and_b32 v{hi}, 0xffff0000, v{src}')

def row_reduce(regs, op='add'):
    for sh in (8, 4, 2, 1):
        for r in regs:
            e(f'v_{op}_f32_dpp v{r}, v{r}, v{r} row_ror:{sh} row_mask:0xf bank_mask:0xf')
        if len(regs) < 3: e('s_nop 1')

def xrow_reduce(regs, tmp, op='add'):
    for r, t in zip(regs, tmp): e(f'v_mov_b32 v{t}, v{r}')
    if len(regs) < 2: e('s_nop 1')
    for r, t in zip(regs, tmp): e(f'v_permlane16_swap_b32 v{r}, v{t}')
    if len(regs) < 2: e('s_nop 1')
    for r, t in zip(regs, tmp): e(f'v_{op}_f32 v{r}, v{r}, v{t}')
    for r, t in zip(regs, tmp): e(f'v_mov_b32 v{t}, v{r}')
    if len(regs) < 2: e('s_nop 1')
    for r, t in zip(regs, tmp): e(f'v_permlane32_swap_b32 v{r}, v{t}')
    if len(regs) < 2: e('s_nop 1')
    for r, t in zip(regs, tmp): e(f'v_{op}_f32 v{r}, v{r}, v{t}')

S_WS, S_DBG, S_X = 4, 8, 12
WSR = f's[{S_WS}:{S_WS+3}]'
ts_n = [0]
def TS():
    if TSTAMP:
        k = ts_n[0]; ts_n[0] += 1
        assert k < 16
        e(f's_memrealtime s[{64+2*k}:{65+2*k}]')

def ts_dump():
    if not TSTAMP: return
    e('s_waitcnt lgkmcnt(0)')
    e('s_lshl_b32 s32, s2, 4'); e('s_add_u32 s32, s32, s63'); e('s_lshl_b32 s32, s32, 7'); e(f's_add_u32 s32, s32, {TSB}')
    e('s_mov_b64 exec, 1')
    e('v_mov_b32 v2, 0')
    for k in range(ts_n[0]):
        e(f'v_mov_b32 v4, s{64+2*k}'); e(f'v_mov_b32 v5, s{65+2*k}')
        e(f'buffer_store_dwordx2 v[4:5], v2, {WSR}, s32 offen offset:{k*8}')
        e('s_nop 1')
    e('s_mov_b64 exec, -1')

C_Q, C_U, C_BP, C_V, C_A, C_O, C_O2 = 0, 4, 8, 12, 16, 20, 24
C_BAR = 64
L_FLG = 128
L_QA   = 256
L_QB   = L_QA + 512
L_UO   = L_QB + 1024
L_BST  = L_UO + 256
L_AML  = L_BST + 256
L_AO   = L_AML + 256
L_P    = L_AO + 8192
L_OV   = L_P + 4608
L_RED  = L_OV + 4096
QS = 1040
L_QABS = L_RED + 24576
L_S    = L_QABS + 32*QS
L_CKV  = L_S + 8192
RS = 1056
L_END  = L_CKV + 64*RS
assert L_END <= 163840, L_END
L_BPS = L_RED
assert L_S + 8192 - L_RED >= 65536

def cbar(k, va, vt, st=32):
    L = uid('cbar')
    e('s_waitcnt lgkmcnt(0)')
    e(f'v_mov_b32 v{va}, {C_BAR + 4*k}')
    e(f'v_mov_b32 v{vt}, 1')
    e('s_mov_b64 exec, 1')
    e(f'ds_add_u32 v{va}, v{vt}')
    e('s_mov_b64 exec, -1')
    lab(L)
    e(f'ds_read_b32 v{vt}, v{va}')
    e('s_waitcnt lgkmcnt(0)')
    e(f'v_readfirstlane_b32 s{st}, v{vt}')
    e('s_nop 0')
    e(f's_cmp_ge_u32 s{st}, 8')
    e(f's_cbranch_scc1 {L}_d')
    e('s_add_u32 s62, s62, 1')
    e('s_cmp_gt_u32 s62, 0x2000000')
    e('s_cbranch_scc1 L_bail')
    e(f's_branch {L}')
    lab(L + '_d')

def lds_wait(idx, va, vt, st=32):
    L = uid('lw')
    e(f'v_mov_b32 v{va}, {L_FLG + 4*idx}')
    lab(L)
    e(f'ds_read_b32 v{vt}, v{va}')
    e('s_waitcnt lgkmcnt(0)')
    e(f'v_readfirstlane_b32 s{st}, v{vt}')
    e('s_nop 0')
    e(f's_cmp_lg_u32 s{st}, 0')
    e(f's_cbranch_scc1 {L}_d')
    e('s_add_u32 s62, s62, 1')
    e('s_cmp_gt_u32 s62, 0x2000000')
    e('s_cbranch_scc1 L_bail')
    e('s_sleep 1')
    e(f's_branch {L}')
    lab(L + '_d')

def lds_set(idx, va, vt):
    e('s_waitcnt lgkmcnt(0)')
    e(f'v_mov_b32 v{va}, {L_FLG + 4*idx}')
    e(f'v_mov_b32 v{vt}, 1')
    e(f'ds_write_b32 v{va}, v{vt}')

def last_arriver(cnt, n, va, vt, skip_label, st=32):
    e('s_waitcnt lgkmcnt(0)')
    e(f'v_mov_b32 v{va}, {cnt}')
    e(f'v_mov_b32 v{vt}, 1')
    e('s_mov_b64 exec, 1')
    e(f'ds_add_rtn_u32 v{vt}, v{va}, v{vt}')
    e('s_waitcnt lgkmcnt(0)')
    e('s_mov_b64 exec, -1')
    e(f'v_readfirstlane_b32 s{st}, v{vt}')
    e('s_nop 0')
    e(f's_cmp_lg_u32 s{st}, {n-1}')
    e(f's_cbranch_scc1 {skip_label}')

def get_tag(vtag, vt):
    L = uid('tag')
    lab(L)
    e(f'v_mov_b32 v{vt}, 0')
    e(f'buffer_load_dword v{vtag}, v{vt}, s[{S_DBG}:{S_DBG+3}], 0 offen sc1')
    e('s_waitcnt vmcnt(0)')
    e(f'v_readfirstlane_b32 s33, v{vtag}')
    e('s_nop 0')
    e('s_add_u32 s62, s62, 1')
    e('s_cmp_gt_u32 s62, 0x2000000')
    e('s_cbranch_scc1 L_bail')
    e('s_cmp_eq_u32 s33, 0')
    e(f's_cbranch_scc1 {L}')

def set_flag(flg_off, idx_sgpr, vtag, vt):
    get_tag(vtag, vt)
    e('s_waitcnt vmcnt(0)')
    e(f's_lshl_b32 s33, s{idx_sgpr}, 2')
    e(f's_add_u32 s33, s33, {flg_off}')
    e(f'v_mov_b32 v{vt}, 0')
    e('s_mov_b64 exec, 1')
    e(f'buffer_store_dword v{vtag}, v{vt}, {WSR}, s33 offen sc1')
    e('s_mov_b64 exec, -1')

def poll_flags(soff_expr_emit, nflags, vtag, vaddr, vf):
    L = uid('poll')
    soff_expr_emit()
    if nflags <= 64: per, nl = 1, nflags
    elif nflags <= 128: per, nl = 2, nflags // 2
    else: per, nl = 4, nflags // 4
    e(f'v_lshlrev_b32 v{vaddr}, {2 + {1:0,2:1,4:2}[per]}, v2')
    if nl < 64: e(f's_mov_b64 exec, {hex((1 << nl) - 1)}')
    e('s_mov_b32 s41, 0')
    lab(L)
    sfx = {1: 'dword', 2: 'dwordx2', 4: 'dwordx4'}[per]
    dst = f'v{vf}' if per == 1 else f'v[{vf}:{vf+per-1}]'
    e(f'buffer_load_{sfx} {dst}, v{vaddr}, {WSR}, s34 offen sc1')
    e('s_waitcnt vmcnt(0)')
    e(f'v_cmp_ne_u32 vcc, v{vtag}, v{vf}')
    for j in range(1, per):
        e(f'v_cmp_ne_u32 s[36:37], v{vtag}, v{vf+j}')
        e('s_or_b64 vcc, vcc, s[36:37]')
    e('s_and_b64 vcc, vcc, exec')
    e(f's_cbranch_vccz {L}_d')
    e('s_add_u32 s41, s41, 1')
    e('s_cmp_gt_u32 s41, 200000')
    e('s_cbranch_scc1 L_bail')
    e(f's_sleep {SLEEP}')
    e(f's_branch {L}')
    lab(L + '_d')
    e('s_mov_b64 exec, -1')

LF_Q, LF_U, LF_BP, LF_O0, LF_O1 = 0, 1, 2, 3, 4

out += ['.amdgcn_target "amdgcn-amd-amdhsa--gfx950"', '.text', f'.globl {NAME}', '.p2align 8', f'.type {NAME},@function']
lab(NAME)
e('s_cmp_ge_u32 s2, 256')
e('s_cbranch_scc1 L_exit')
TS()
e(f's_load_dwordx2 s[44:45], s[0:1], {KA["ws"]}')
e(f's_load_dwordx2 s[46:47], s[0:1], {KA["dbg"]}')
e(f's_load_dwordx2 s[48:49], s[0:1], {KA["A_x"]}')
e('v_lshrrev_b32 v1, 6, v0')
e('v_and_b32 v2, 63, v0')
e('v_readfirstlane_b32 s3, v1')
e('v_lshrrev_b32 v3, 4, v2')
e('v_and_b32 v4, 15, v2')
e(f's_mov_b32 s40, {f32hex(CSC)}')
e('s_mov_b32 s63, s3')
e('s_mov_b32 s62, 0')
e('s_cmp_ge_u32 s3, 8')
e('s_cbranch_scc1 L_C')

e(f's_load_dwordx2 s[50:51], s[0:1], {KA["A_k"]}')
e(f's_load_dwordx2 s[52:53], s[0:1], {KA["A_v"]}')
e('s_waitcnt lgkmcnt(0)')
srd(S_WS, 44, WS_USED); srd(S_DBG, 46, 256)
srd(16, 50, 33554432); srd(20, 52, 33554432)
e('s_lshl_b32 s32, s2, 17')
e('s_lshl_b32 s33, s3, 14')
e('s_add_u32 s32, s32, s33')
e('v_lshlrev_b32 v5, 8, v3')
e('v_lshl_add_u32 v5, v4, 4, v5')
e('v_add_u32 v5, s32, v5')
e('s_mov_b32 s44, 0'); e('s_mov_b32 s45, 4096'); e('s_mov_b32 s46, 8192'); e('s_mov_b32 s47, 12288')
KB = 64
def kload(i, srdn):
    if NOA: return
    e(f'buffer_load_dwordx4 v[{KB+4*i}:{KB+4*i+3}], v5, s[{srdn}:{srdn+3}], s{44+i//4} offen offset:{(i%4)*1024} nt')
e('s_cmp_lg_u32 s3, 0')
e('s_cbranch_scc1 L_A_noinit')
e('v_lshlrev_b32 v6, 2, v2')
e('v_mov_b32 v7, 0')
e('ds_write_b32 v6, v7')
e('s_waitcnt lgkmcnt(0)')
lab('L_A_noinit')
e('s_barrier')
for i in range(16):
    if i >= KDEPTH: e(f's_waitcnt vmcnt({KDEPTH-1})')
    kload(i, 16)
TS()
lds_wait(LF_Q, 6, 7)
TS()
e(f'v_lshlrev_b32 v10, 4, v4')
e(f'ds_read_b128 v[48:51], v10 offset:{L_QA}')
e(f'ds_read_b128 v[52:55], v10 offset:{L_QA+256}')
for k in range(32): e(f'v_mov_b32 v{16+k}, 0')
e('s_waitcnt vmcnt(0) lgkmcnt(0)')
for i in range(16):
    for j in range(4):
        for hq in range(2):
            e(f'v_dot2c_f32_bf16 v{16+2*i+hq}, v{KB+4*i+j}, v{48+4*hq+j}')
for i in range(VDEPTH): kload(i, 20)
TS()
e('s_nop 3')
row_reduce([16+k for k in range(32)])
for hq in range(2):
    e(f'v_max_f32 v{56+hq}, v{16+hq}, v{18+hq}')
    for i in range(2, 16):
        e(f'v_max_f32 v{56+hq}, v{56+hq}, v{16+2*i+hq}')
xrow_reduce([56, 57], [58, 59], 'max')
for hq in range(2):
    e(f'v_mul_f32 v{56+hq}, s40, v{56+hq}')
for i in range(16):
    for hq in range(2):
        e(f'v_fma_f32 v{16+2*i+hq}, v{16+2*i+hq}, s40, -v{56+hq}')
for k in range(32): e(f'v_exp_f32 v{16+k}, v{16+k}')
e('s_nop 0')
for hq in range(2):
    e(f'v_add_f32 v{58+hq}, v{16+hq}, v{18+hq}')
    for i in range(2, 16):
        e(f'v_add_f32 v{58+hq}, v{58+hq}, v{16+2*i+hq}')
xrow_reduce([58, 59], [60, 61], 'add')
AC = 48
e('v_mov_b32 v10, v56'); e('v_mov_b32 v11, v58'); e('v_mov_b32 v12, v57'); e('v_mov_b32 v13, v59')
for k in range(16): e(f'v_mov_b32 v{AC+k}, 0')
for i in range(16):
    nissued = min(16, i + VDEPTH)
    e(f's_waitcnt vmcnt({nissued - i - 1})')
    for j in range(4):
        unpack(14, 15, KB+4*i+j)
        for hq in range(2):
            e(f'v_fmac_f32 v{AC+hq*8+2*j}, v{16+2*i+hq}, v14')
            e(f'v_fmac_f32 v{AC+hq*8+2*j+1}, v{16+2*i+hq}, v15')
    if i + VDEPTH < 16: kload(i + VDEPTH, 20)
TS()
xrow_reduce([AC+k for k in range(16)], [64+k for k in range(16)], 'add')
e('s_lshl_b32 s37, s3, 10')
e('v_lshlrev_b32 v7, 5, v4')
e('v_add_u32 v7, s37, v7')
e('s_lshl_b32 s37, s3, 4')
e('v_mov_b32 v6, s37')
e('s_mov_b64 exec, 0xffff')
e(f'ds_write_b128 v7, v[{AC}:{AC+3}] offset:{L_AO}')
e(f'ds_write_b128 v7, v[{AC+4}:{AC+7}] offset:{L_AO+16}')
e(f'ds_write_b128 v7, v[{AC+8}:{AC+11}] offset:{L_AO+512}')
e(f'ds_write_b128 v7, v[{AC+12}:{AC+15}] offset:{L_AO+528}')
e(f'ds_write_b128 v6, v[10:13] offset:{L_AML}')
e('s_mov_b64 exec, -1')
last_arriver(C_A, 8, 6, 7, 'L_A_done')
e('v_lshrrev_b32 v6, 5, v2')
e('v_lshlrev_b32 v7, 3, v6')
for s in range(8):
    e(f'ds_read_b64 v[{64+2*s}:{65+2*s}], v7 offset:{L_AML+s*16}')
e('v_lshlrev_b32 v9, 4, v2')
for s in range(8):
    e(f'ds_read_b128 v[{20+4*s}:{23+4*s}], v9 offset:{L_AO+s*1024}')
e('s_waitcnt lgkmcnt(0)')
e('v_max_f32 v12, v64, v66')
for s in range(2, 8): e(f'v_max_f32 v12, v12, v{64+2*s}')
for s in range(8): e(f'v_sub_f32 v{64+2*s}, v{64+2*s}, v12')
for s in range(8): e(f'v_exp_f32 v{64+2*s}, v{64+2*s}')
e('v_mov_b32 v13, 0')
for k in range(4): e(f'v_mov_b32 v{16+k}, 0')
for s in range(8):
    e(f'v_fmac_f32 v13, v{64+2*s}, v{65+2*s}')
    for k in range(4): e(f'v_fmac_f32 v{16+k}, v{64+2*s}, v{20+4*s+k}')
e('s_lshl_b32 s34, s2, 10')
e(f's_add_u32 s34, s34, {AP}')
e(f'buffer_store_dwordx4 v[16:19], v9, {WSR}, s34 offen sc1')
e('s_lshl_b32 s34, s2, 4')
e(f's_add_u32 s34, s34, {AML}')
e('v_and_b32 v6, 31, v2')
e('v_cmp_eq_u32 vcc, 0, v6')
e('s_and_saveexec_b64 s[36:37], vcc')
e(f'buffer_store_dwordx2 v[12:13], v7, {WSR}, s34 offen sc1')
e('s_mov_b64 exec, s[36:37]')
VTAG = 8
set_flag(FLG_AP, 2, VTAG, 6)
lab('L_A_done')
TS()
ts_dump()
e('s_endpgm')
nA = ts_n[0]

lab('L_C')
ts_n[0] = 1
e(f's_load_dwordx2 s[50:51], s[0:1], {KA["A_wq"]}')
e(f's_load_dwordx2 s[52:53], s[0:1], {KA["B_wq"]}')
e(f's_load_dwordx2 s[54:55], s[0:1], {KA["B_wuk"]}')
e(f's_load_dwordx2 s[56:57], s[0:1], {KA["B_ckv"]}')
e('s_sub_u32 s3, s3, 8')
e('s_waitcnt lgkmcnt(0)')
srd(S_WS, 44, WS_USED); srd(S_DBG, 46, 256); srd(S_X, 48, 2304)
e('s_lshr_b32 s32, s2, 7')
e('s_cmp_eq_u32 s32, 0')
e('s_cselect_b32 s50, s50, s52')
e('s_cselect_b32 s51, s51, s53')
srd(16, 50, 4718592)
srd(20, 54, 4194304)
srd(24, 56, 8388608)
e('s_or_b32 s32, s2, s3')
e('s_cmp_lg_u32 s32, 0')
e('s_cbranch_scc1 L_C_notag')
e('s_memrealtime s[60:61]')
e('s_waitcnt lgkmcnt(0)')
e('s_or_b32 s60, s60, 1')
e('v_mov_b32 v6, 0')
e('v_mov_b32 v7, s60')
e('s_mov_b64 exec, 1')
e(f'buffer_store_dword v7, v6, s[{S_DBG}:{S_DBG+3}], 0 offen sc1')
e('s_mov_b64 exec, -1')
lab('L_C_notag')
e('s_and_b32 s33, s2, 3')
e('s_mul_i32 s33, s33, 144')
e('s_mul_i32 s34, s3, 18')
e('s_add_u32 s33, s33, s34')
e('v_lshrrev_b32 v5, 5, v2')
e('v_add_u32 v5, s33, v5')
e('v_lshlrev_b32 v7, 1, v5')
for i in range(9):
    for b in range(2):
        e(f'buffer_load_ushort v{40+2*i+b}, v7, s[{S_X}:{S_X+3}], 0 offen offset:{i*4+b*1152}')
e('s_bfe_u32 s35, s2, 0x50002')
e('s_lshl_b32 s35, s35, 8')
e('v_lshlrev_b32 v6, 13, v5')
e('v_and_b32 v8, 31, v2')
e('v_lshl_add_u32 v6, v8, 3, v6')
e('v_add_u32 v6, s35, v6')
e('s_mov_b32 s36, 0')
for i in range(9):
    e(f'buffer_load_dwordx2 v[{16+2*i}:{17+2*i}], v6, s[16:19], s36 offen nt')
    if i < 8: e('s_add_u32 s36, s36, 16384')
e('s_lshr_b32 s42, s2, 3')
e('s_and_b32 s43, s2, 7')
e('s_lshl_b32 s33, s43, 6')
e('s_lshl_b32 s34, s3, 3')
e('s_add_u32 s33, s33, s34')
e('v_add_u32 v9, s33, v3')
e('v_lshlrev_b32 v10, 13, v9')
e('s_lshl_b32 s34, s42, 8')
e('v_lshl_add_u32 v10, v4, 4, v10')
e('v_add_u32 v10, s34, v10')
e('s_mov_b32 s36, 32768')
e('buffer_load_dwordx4 v[64:67], v10, s[20:23], 0 offen nt')
e('buffer_load_dwordx4 v[68:71], v10, s[20:23], s36 offen nt')
e('s_barrier')
e('s_waitcnt vmcnt(2)')
for k in range(18): e(f'v_lshlrev_b32 v{40+k}, 16, v{40+k}')
for k in range(8): e(f'v_mov_b32 v{72+k}, 0')
for i in range(9):
    for j in range(2):
        unpack(12, 13, 16+2*i+j)
        for b in range(2):
            e(f'v_fmac_f32 v{72+4*b+2*j}, v{40+2*i+b}, v12')
            e(f'v_fmac_f32 v{72+4*b+2*j+1}, v{40+2*i+b}, v13')
e('s_lshl_b32 s33, s3, 1')
e('v_lshrrev_b32 v12, 5, v2')
e('v_add_u32 v12, s33, v12')
e('v_lshlrev_b32 v12, 10, v12')
e('v_lshl_add_u32 v12, v8, 4, v12')
e(f'v_add_u32 v12, {L_RED}, v12')
e('ds_write_b128 v12, v[72:75]')
e('ds_write_b128 v12, v[76:79] offset:512')
e('s_cmp_ge_u32 s2, 128')
e('s_cbranch_scc1 L_C_nockv')
e('s_lshl_b32 s33, s2, 16')
e('s_lshl_b32 s34, s3, 13')
e('s_add_u32 s33, s33, s34')
e('v_lshlrev_b32 v11, 4, v2')
e('s_mul_i32 s34, s3, %d' % (8*RS))
e(f's_add_u32 s34, s34, {L_CKV}')
for i in range(8):
    e('s_mov_b32 m0, s34')
    e('s_nop 0')
    e('buffer_load_dwordx4 v11, s[24:27], s33 offen nt lds')
    if i < 7:
        e('s_add_u32 s33, s33, 1024'); e(f's_add_u32 s34, s34, {RS}')
lab('L_C_nockv')
TS()
VT = 14
last_arriver(C_Q, 8, 12, 13, 'L_C_qdone')
e('v_lshlrev_b32 v12, 4, v2')
e(f'v_add_u32 v13, {L_RED}, v12')
for q in range(2):
    for s in range(8):
        e(f'ds_read_b128 v[{16+4*s}:{19+4*s}], v13 offset:{(q*8+s)*1024}')
    e('s_waitcnt lgkmcnt(0)')
    if q == 0:
        for k in range(4): e(f'v_mov_b32 v{48+k}, v{16+k}')
        rng = range(1, 8)
    else: rng = range(8)
    for s in rng:
        for k in range(4): e(f'v_add_f32 v{48+k}, v{48+k}, v{16+4*s+k}')
e('s_lshl_b32 s34, s2, 10')
e(f's_add_u32 s34, s34, {QP}')
e(f'buffer_store_dwordx4 v[48:51], v12, {WSR}, s34 offen sc1')
set_flag(FLG_Q, 2, VT, 13)
lab('L_C_qdone')
TS()
e('s_cmp_lg_u32 s3, 0')
e('s_cbranch_scc1 L_C_w1')
get_tag(VT, 13)
def em():
    e('s_bfe_u32 s35, s2, 0x40003')
    e('s_lshl_b32 s34, s35, 5')
poll_flags(em, 8, VT, 12, 16)
e('s_lshr_b32 s36, s2, 7')
e('s_lshl_b32 s34, s35, 13')
e('s_lshl_b32 s37, s36, 9')
e('s_add_u32 s34, s34, s37')
e(f's_add_u32 s34, s34, {QP}')
e('v_lshrrev_b32 v12, 5, v2')
e('v_lshlrev_b32 v12, 12, v12')
e('v_and_b32 v13, 31, v2')
e('v_lshl_add_u32 v12, v13, 4, v12')
for kq in range(4):
    e(f'buffer_load_dwordx4 v[{32+4*kq}:{35+4*kq}], v12, {WSR}, s34 offen offset:{kq*1024} sc1')
def em():
    e('s_add_u32 s34, s42, 32')
    e('s_lshl_b32 s34, s34, 4')
poll_flags(em, 4, VT, 12, 16)
for kq in range(1, 4):
    for j in range(4): e(f'v_add_f32 v{32+j}, v{32+j}, v{32+4*kq+j}')
e('v_cvt_pk_bf16_f32 v32, v32, v33')
e('v_cvt_pk_bf16_f32 v33, v34, v35')
e('v_lshlrev_b32 v12, 3, v2')
e(f'ds_write_b64 v12, v[32:33] offset:{L_QA}')
e('s_add_u32 s34, s42, 32')
e('s_lshl_b32 s34, s34, 12')
e(f's_add_u32 s34, s34, {QP}')
e('v_lshlrev_b32 v12, 4, v2')
for kq in range(4):
    e(f'buffer_load_dwordx4 v[{16+4*kq}:{19+4*kq}], v12, {WSR}, s34 offen offset:{kq*1024} sc1')
e('s_waitcnt vmcnt(0)')
for kq in range(1, 4):
    for j in range(4): e(f'v_add_f32 v{16+j}, v{16+j}, v{16+4*kq+j}')
e('v_cvt_pk_bf16_f32 v20, v16, v17')
e('v_cvt_pk_bf16_f32 v21, v18, v19')
unpack(16, 17, 20); unpack(18, 19, 21)
e(f'ds_write_b128 v12, v[16:19] offset:{L_QB}')
lds_set(LF_Q, 12, 13)
lab('L_C_w1')
lds_wait(LF_Q, 12, 13)
TS()
e('v_lshlrev_b32 v13, 5, v4')
e(f'ds_read_b128 v[32:35], v13 offset:{L_QB}')
e(f'ds_read_b128 v[36:39], v13 offset:{L_QB+16}')
e(f'ds_read_b128 v[40:43], v13 offset:{L_QB+512}')
e(f'ds_read_b128 v[44:47], v13 offset:{L_QB+528}')
for k in range(4): e(f'v_mov_b32 v{48+k}, 0')
e('s_waitcnt vmcnt(0) lgkmcnt(0)')
for i in range(2):
    for j in range(4):
        unpack(12, 13, 64+4*i+j)
        for b in range(2):
            e(f'v_fmac_f32 v{48+2*i+b}, v{32+8*b+2*j}, v12')
            e(f'v_fmac_f32 v{48+2*i+b}, v{32+8*b+2*j+1}, v13')
e('s_nop 1')
row_reduce([48, 49, 50, 51])
e('v_cmp_eq_u32 vcc, 1, v4'); e('s_nop 1'); e('v_cndmask_b32 v48, v48, v49, vcc')
e('v_cmp_eq_u32 vcc, 2, v4'); e('s_nop 1'); e('v_cndmask_b32 v48, v48, v50, vcc')
e('v_cmp_eq_u32 vcc, 3, v4'); e('s_nop 1'); e('v_cndmask_b32 v48, v48, v51, vcc')
e('v_cvt_pk_bf16_f32 v48, v48, v48')
e('v_and_b32 v12, 1, v4')
e('v_lshlrev_b32 v12, 7, v12')
e('v_lshrrev_b32 v13, 1, v4')
e('v_lshl_add_u32 v13, v13, 2, v3')
e('s_lshl_b32 s34, s3, 3')
e('v_add_u32 v13, s34, v13')
e('v_lshl_add_u32 v12, v13, 1, v12')
e('s_mov_b32 exec_lo, 0x000f000f'); e('s_mov_b32 exec_hi, 0x000f000f')
e(f'ds_write_b16 v12, v48 offset:{L_UO}')
e('s_mov_b64 exec, -1')
e(f's_load_dwordx2 s[50:51], s[0:1], {KA["B_wuv"]}')
e('s_waitcnt lgkmcnt(0)')
srd(20, 50, 4194304)
e('s_mov_b32 s36, 32768')
e('buffer_load_dwordx4 v[64:67], v10, s[20:23], 0 offen nt')
e('buffer_load_dwordx4 v[68:71], v10, s[20:23], s36 offen nt')
last_arriver(C_U, 8, 12, 13, 'L_C_udone')
e('v_lshlrev_b32 v12, 4, v2')
e(f'ds_read_b128 v[16:19], v12 offset:{L_UO}')
e('v_lshrrev_b32 v13, 3, v2')
e('v_lshlrev_b32 v13, 15, v13')
e('v_and_b32 v12, 7, v2')
e('v_lshl_add_u32 v12, v12, 4, v13')
e('s_lshl_b32 s34, s42, 10')
e('s_lshl_b32 s35, s43, 7')
e('s_add_u32 s34, s34, s35')
e(f's_add_u32 s34, s34, {QABS}')
e('s_waitcnt lgkmcnt(0)')
e('s_mov_b64 exec, 0xffff')
e(f'buffer_store_dwordx4 v[16:19], v12, {WSR}, s34 offen sc1')
e('s_mov_b64 exec, -1')
set_flag(FLG_U, 2, VT, 13)
lab('L_C_udone')
TS()
e('s_cmp_ge_u32 s2, 128')
e('s_cbranch_scc1 L_C_noB')
e('s_cmp_lg_u32 s3, 0')
e('s_cbranch_scc1 L_C_w2')
def em():
    e(f's_mov_b32 s34, {FLG_U}')
poll_flags(em, 256, VT, 12, 16)
lds_set(LF_U, 12, 13)
lab('L_C_w2')
lds_wait(LF_U, 12, 13)
TS()
e('s_lshr_b32 s33, s2, 6')
e('s_lshl_b32 s34, s33, 15')
e('s_lshl_b32 s35, s3, 12')
e('s_add_u32 s34, s34, s35')
e(f's_add_u32 s34, s34, {QABS}')
e('v_lshlrev_b32 v12, 4, v2')
for k in range(4):
    e(f'buffer_load_dwordx4 v[{16+4*k}:{19+4*k}], v12, {WSR}, s34 offen offset:{k*1024} sc1')
e(f's_mul_i32 s35, s3, {4*QS}')
e(f's_add_u32 s35, s35, {L_QABS}')
e('v_add_u32 v13, s35, v12')
e('s_waitcnt vmcnt(0)')
for k in range(4):
    e(f'ds_write_b128 v13, v[{16+4*k}:{19+4*k}] offset:{k*QS}')
cbar(0, 12, 13)
TS()
e('s_lshr_b32 s35, s3, 2')
e('s_and_b32 s36, s3, 3')
e('s_lshl_b32 s37, s36, 4')
e('v_add_u32 v12, s37, v4')
e(f'v_mul_u32_u24 v12, {RS}, v12')
e('v_lshl_add_u32 v12, v3, 4, v12')
e(f'v_add_u32 v12, {L_CKV}, v12')
e('s_lshl_b32 s37, s35, 4')
e('v_add_u32 v13, s37, v4')
e(f'v_mul_u32_u24 v13, {QS}, v13')
e('v_lshl_add_u32 v13, v3, 4, v13')
e(f'v_add_u32 v13, {L_QABS}, v13')
for k in range(4): e(f'v_mov_b32 v{24+k}, 0')
for half in range(2):
    for q in range(8):
        ks = half*8+q
        e(f'ds_read_b128 v[{28+4*q}:{31+4*q}], v12 offset:{ks*64}')
        e(f'ds_read_b128 v[{72+4*q}:{75+4*q}], v13 offset:{ks*64}')
    e('s_waitcnt lgkmcnt(0)')
    for q in range(8):
        e(f'v_mfma_f32_16x16x32_bf16 v[24:27], v[{28+4*q}:{31+4*q}], v[{72+4*q}:{75+4*q}], v[24:27]')
    e('s_nop 3')
e('s_nop 8')
e('s_lshl_b32 s37, s35, 12')
e('s_lshl_b32 s34, s36, 6')
e('s_add_u32 s37, s37, s34')
e('v_lshlrev_b32 v12, 8, v4')
e('v_lshl_add_u32 v12, v3, 4, v12')
e('v_add_u32 v12, s37, v12')
e(f'v_add_u32 v12, {L_S}, v12')
e('ds_write_b128 v12, v[24:27]')
cbar(1, 12, 13)
e('s_lshl_b32 s37, s3, 2')
e('v_add_u32 v12, s37, v3')
e('v_lshlrev_b32 v13, 8, v12')
e('v_lshl_add_u32 v13, v4, 4, v13')
e(f'v_add_u32 v13, {L_S}, v13')
e('ds_read_b128 v[16:19], v13')
e('s_waitcnt lgkmcnt(0)')
e('v_max_f32 v20, v16, v17')
e('v_max3_f32 v20, v20, v18, v19')
e('s_nop 1')
row_reduce([20], 'max')
e('v_mul_f32 v20, s40, v20')
for k in range(4): e(f'v_fma_f32 v{16+k}, v{16+k}, s40, -v20')
for k in range(4): e(f'v_exp_f32 v{16+k}, v{16+k}')
e('s_nop 0')
e('v_add_f32 v21, v16, v17')
e('v_add_f32 v22, v18, v19')
e('v_add_f32 v21, v21, v22')
e('v_cvt_pk_bf16_f32 v22, v16, v17')
e('v_cvt_pk_bf16_f32 v23, v18, v19')
row_reduce([21], 'add')
e('v_mul_u32_u24 v13, 144, v12')
e('v_lshl_add_u32 v13, v4, 3, v13')
e(f'v_add_u32 v13, {L_P}, v13')
e('ds_write_b64 v13, v[22:23]')
e('v_lshlrev_b32 v13, 3, v12')
e('s_mov_b32 exec_lo, 0x00010001'); e('s_mov_b32 exec_hi, 0x00010001')
e(f'ds_write_b64 v13, v[20:21] offset:{L_BST}')
e('s_mov_b64 exec, -1')
cbar(2, 12, 13)
e('v_mul_u32_u24 v12, 144, v4')
e('v_lshl_add_u32 v12, v3, 4, v12')
e(f'v_add_u32 v12, {L_P}, v12')
for hh in range(2):
    for ks in range(2):
        r = 16 + (hh*2+ks)*4
        e(f'ds_read_b128 v[{r}:{r+3}], v12 offset:{hh*16*144+ks*64}')
e('v_lshrrev_b32 v13, 2, v4')
e('v_lshl_add_u32 v13, v3, 3, v13')
e(f'v_mul_u32_u24 v13, {RS}, v13')
e('v_and_b32 v12, 3, v4')
e('v_lshl_add_u32 v13, v12, 3, v13')
e('s_lshl_b32 s37, s3, 7')
e(f's_add_u32 s37, s37, {L_CKV}')
e('v_add_u32 v13, s37, v13')
for ct in range(4):
    for ks in range(2):
        for t in range(2):
            r = 32 + ((ct*2+ks)*2+t)*2
            e(f'ds_read_b64_tr_b16 v[{r}:{r+1}], v13 offset:{(ks*32+t*4)*RS + ct*32}')
for k in range(32): e(f'v_mov_b32 v{72+k}, 0')
e('s_waitcnt lgkmcnt(0)')
for ct in range(4):
    for hh in range(2):
        for ks in range(2):
            a = 32 + (ct*2+ks)*4
            bq = 16 + (hh*2+ks)*4
            d = 72 + (ct*2+hh)*4
            e(f'v_mfma_f32_16x16x32_bf16 v[{d}:{d+3}], v[{a}:{a+3}], v[{bq}:{bq+3}], v[{d}:{d+3}]')
e('s_nop 15')
TS()
e('s_lshl_b32 s37, s3, 13')
e(f's_add_u32 s37, s37, {L_BPS}')
e('v_lshlrev_b32 v12, 8, v4')
e('v_lshl_add_u32 v12, v3, 4, v12')
e('v_add_u32 v12, s37, v12')
for ct in range(4):
    for hh in range(2):
        d = 72 + (ct*2+hh)*4
        e(f'ds_write_b128 v12, v[{d}:{d+3}] offset:{hh*4096+ct*64}')
e('v_lshlrev_b32 v13, 4, v2')
e('v_add_u32 v13, s37, v13')
e('s_waitcnt lgkmcnt(0)')
for k in range(8):
    e(f'ds_read_b128 v[{16+4*k}:{19+4*k}], v13 offset:{k*1024}')
e('s_lshl_b32 s34, s2, 16')
e('s_lshl_b32 s37, s3, 8')
e('s_add_u32 s34, s34, s37')
e(f's_add_u32 s34, s34, {BP}')
e('v_lshlrev_b32 v12, 11, v3')
e('v_lshl_add_u32 v12, v4, 4, v12')
e('s_waitcnt lgkmcnt(0)')
for k in range(8):
    e(f'buffer_store_dwordx4 v[{16+4*k}:{19+4*k}], v12, {WSR}, s34 offen sc1')
    if k < 7: e('s_add_u32 s34, s34, 8192')
e('s_waitcnt vmcnt(0)')
TS()
last_arriver(C_BP, 8, 12, 13, 'L_C_bdone')
e('v_lshlrev_b32 v12, 4, v2')
e(f'ds_read_b128 v[16:19], v12 offset:{L_BST}')
e('s_lshl_b32 s34, s2, 8')
e(f's_add_u32 s34, s34, {BML}')
e('s_waitcnt lgkmcnt(0)')
e('s_mov_b64 exec, 0xffff')
e(f'buffer_store_dwordx4 v[16:19], v12, {WSR}, s34 offen sc1')
e('s_mov_b64 exec, -1')
set_flag(FLG_BP, 2, VT, 13)
lab('L_C_bdone')
TS()
lab('L_C_noB')
e(f's_load_dwordx2 s[50:51], s[0:1], {KA["A_wo"]}')
e(f's_load_dwordx2 s[52:53], s[0:1], {KA["B_wo"]}')
def task_decode(st):
    e(f's_cmp_ge_u32 s{st}, 144')
    e('s_cselect_b32 s58, 1, 0')
    e('s_mul_i32 s59, s58, 144')
    e(f's_sub_u32 s59, s{st}, s59')
    e('s_and_b32 s60, s59, 15')
    e('s_lshr_b32 s59, s59, 4')
def o_prefetch(st, reg):
    task_decode(st)
    e('s_cmp_eq_u32 s58, 0')
    e('s_cselect_b32 s54, s50, s52')
    e('s_cselect_b32 s55, s51, s53')
    srd(24, 54, 4718592)
    e('s_lshl_b32 s33, s60, 8')
    e('s_lshl_b32 s34, s3, 5')
    e('s_add_u32 s33, s33, s34')
    e('v_lshrrev_b32 v12, 3, v2')
    e('v_add_u32 v12, s33, v12')
    e('s_movk_i32 s34, 1152')
    e('v_mul_lo_u32 v12, v12, s34')
    e('v_and_b32 v13, 7, v2')
    e('v_lshl_add_u32 v12, v13, 4, v12')
    e('s_lshl_b32 s34, s59, 7')
    for i in range(4):
        e(f'buffer_load_dwordx4 v[{reg+4*i}:{reg+4*i+3}], v12, s[24:27], s34 offen nt')
        if i < 3: e(f's_add_u32 s34, s34, {8*1152}')
e('s_waitcnt lgkmcnt(0)')
o_prefetch(2, 96)
e('s_sub_u32 s61, s2, 128')
e('s_cmp_lt_u32 s61, 32')
e('s_cbranch_scc0 L_C_not2')
e('s_add_u32 s61, s61, 256')
o_prefetch(61, 112)
lab('L_C_not2')
e('s_cmp_lg_u32 s3, 0')
e('s_cbranch_scc1 L_C_w3')
get_tag(VT, 13)
def em():
    e(f's_mov_b32 s34, {FLG_BP}')
poll_flags(em, 128, VT, 12, 16)
lds_set(LF_BP, 12, 13)
lab('L_C_w3')
lds_wait(LF_BP, 12, 13)
TS()
e('s_lshr_b32 s33, s3, 2')
e('s_and_b32 s35, s3, 3')
e('s_lshl_b32 s34, s33, 6')
e('v_add_u32 v12, s34, v2')
e('v_lshlrev_b32 v12, 5, v12')
e('v_add_u32 v12, s42, v12')
e('v_lshlrev_b32 v12, 3, v12')
e(f's_mov_b32 s34, {BML}')
e(f'buffer_load_dwordx2 v[40:41], v12, {WSR}, s34 offen sc1')
e('s_lshl_b32 s34, s35, 4')
e('v_add_u32 v15, s34, v3')
e('s_lshl_b32 s34, s33, 6')
e('v_add_u32 v13, s34, v15')
e('v_lshlrev_b32 v13, 5, v13')
e('v_add_u32 v13, s42, v13')
e('v_lshlrev_b32 v13, 11, v13')
e('v_lshl_add_u32 v13, v4, 4, v13')
e('s_lshl_b32 s34, s43, 8')
e(f's_add_u32 s34, s34, {BP}')
for i in range(4):
    e(f'buffer_load_dwordx4 v[{16+4*i}:{19+4*i}], v13, {WSR}, s34 offen sc1')
    if i < 3: e(f's_add_u32 s34, s34, {4*32*2048}')
e('s_waitcnt vmcnt(4)')
e('v_mov_b32 v42, v40')
e('s_nop 1')
row_reduce([42], 'max')
xrow_reduce([42], [43], 'max')
e('v_sub_f32 v40, v40, v42')
e('v_exp_f32 v40, v40')
e('s_nop 0')
e('v_mul_f32 v44, v40, v41')
e('s_nop 1')
row_reduce([44], 'add')
xrow_reduce([44], [43], 'add')
e('v_rcp_f32 v44, v44')
e('s_nop 0')
e('v_mul_f32 v40, v40, v44')
for i in range(4):
    e(f'v_add_u32 v45, {4*i}, v15')
    e('v_lshlrev_b32 v45, 2, v45')
    e(f'ds_bpermute_b32 v{48+i}, v45, v40')
e('s_waitcnt vmcnt(0) lgkmcnt(0)')
for k in range(4): e(f'v_mov_b32 v{52+k}, 0')
for i in range(4):
    for k in range(4): e(f'v_fmac_f32 v{52+k}, v{48+i}, v{16+4*i+k}')
xrow_reduce([52, 53, 54, 55], [56, 57, 58, 59], 'add')
VR = L_OV
VR = L_CKV
e('s_lshl_b32 s34, s3, 8')
e(f's_add_u32 s34, s34, {VR}')
e('v_lshlrev_b32 v12, 4, v4')
e('v_add_u32 v12, s34, v12')
e('ds_write_b128 v12, v[52:55]')
cbar(3, 12, 13)
e('s_lshl_b32 s34, s3, 3')
e('v_add_u32 v12, s34, v3')
e('v_lshlrev_b32 v12, 2, v12')
e(f'v_add_u32 v12, {VR}, v12')
for i in range(2):
    for b in range(2):
        for q in range(4):
            e(f'ds_read_b32 v{16+(i*2+b)*4+q}, v12 offset:{(b*4+q)*256+i*16}')
e('s_waitcnt lgkmcnt(0)')
for ib in range(4):
    for q in range(1, 4): e(f'v_add_f32 v{16+ib*4}, v{16+ib*4}, v{16+ib*4+q}')
for k in range(16): e(f'v_mov_b32 v{32+k}, 0')
for i in range(2):
    for j in range(4):
        unpack(12, 13, 64+4*i+j)
        for b in range(2):
            e(f'v_fmac_f32 v{32+8*b+2*j}, v{16+(i*2+b)*4}, v12')
            e(f'v_fmac_f32 v{32+8*b+2*j+1}, v{16+(i*2+b)*4}, v13')
xrow_reduce([32+k for k in range(16)], [48+k for k in range(16)], 'add')
e('s_lshl_b32 s34, s3, 10')
e(f's_add_u32 s34, s34, {VR+4096}')
e('v_lshlrev_b32 v12, 5, v4')
e('v_add_u32 v12, s34, v12')
e('s_mov_b64 exec, 0xffff')
e('ds_write_b128 v12, v[32:35]')
e('ds_write_b128 v12, v[36:39] offset:16')
e('ds_write_b128 v12, v[40:43] offset:512')
e('ds_write_b128 v12, v[44:47] offset:528')
e('s_mov_b64 exec, -1')
last_arriver(C_V, 8, 12, 13, 'L_C_vdone')
e('v_lshlrev_b32 v12, 4, v2')
e(f'v_add_u32 v13, {VR+4096}, v12')
for s in range(8): e(f'ds_read_b128 v[{16+4*s}:{19+4*s}], v13 offset:{s*1024}')
e('s_waitcnt lgkmcnt(0)')
for s in range(1, 8):
    for k in range(4): e(f'v_add_f32 v{16+k}, v{16+k}, v{16+4*s+k}')
e('s_lshl_b32 s34, s2, 10')
e(f's_add_u32 s34, s34, {CTXP}')
e(f'buffer_store_dwordx4 v[16:19], v12, {WSR}, s34 offen sc1')
set_flag(FLG_V, 2, VT, 13)
lab('L_C_vdone')
TS()
def o_stage(st, reg, cnt, bark, LOV, LRD, lf):
    task_decode(st)
    Lb, Lj, Ld, Lw, Lw2, Lp = uid('ob'), uid('oj'), uid('od'), uid('ow'), uid('ow2'), uid('op')
    e('s_cmp_lg_u32 s3, 0')
    e(f's_cbranch_scc1 {Lw}')
    e('s_cmp_eq_u32 s58, 0')
    e(f's_cbranch_scc0 {Lp}')
    for b in range(2):
        def em():
            e(f's_add_u32 s34, s60, {b*16}')
            e('s_lshl_b32 s34, s34, 5')
            e(f's_add_u32 s34, s34, {FLG_AP}')
        poll_flags(em, 8, VT, 12, 16)
    e(f's_branch {Lw2}')
    lab(Lp)
    def em():
        e('s_lshl_b32 s34, s60, 6')
        e(f's_add_u32 s34, s34, {FLG_V}')
    poll_flags(em, 16, VT, 12, 16)
    lab(Lw2)
    lds_set(lf, 12, 13)
    lab(Lw)
    lds_wait(lf, 12, 13)
    e('s_cmp_eq_u32 s58, 0')
    e(f's_cbranch_scc0 {Lb}')
    e('s_lshr_b32 s33, s3, 2')
    e('s_and_b32 s35, s3, 3')
    e('s_lshl_b32 s34, s33, 4')
    e('s_add_u32 s34, s34, s60')
    e('s_lshl_b32 s36, s34, 13')
    e('s_lshl_b32 s37, s35, 8')
    e('s_add_u32 s36, s36, s37')
    e(f's_add_u32 s36, s36, {AP}')
    e('v_lshlrev_b32 v12, 2, v2')
    e('s_add_u32 s37, s36, 4096')
    for c in range(8):
        e(f'buffer_load_dword v{16+c}, v12, {WSR}, s{36 if c<4 else 37} offen offset:{(c%4)*1024} sc1')
    e('s_lshl_b32 s36, s34, 7')
    e('s_lshr_b32 s37, s35, 1')
    e('s_lshl_b32 s37, s37, 3')
    e('s_add_u32 s36, s36, s37')
    e(f's_add_u32 s36, s36, {AML}')
    e('v_mov_b32 v12, 0')
    for c in range(8):
        e(f'buffer_load_dwordx2 v[{24+2*c}:{25+2*c}], v12, {WSR}, s36 offen offset:{c*16} sc1')
    e('s_waitcnt vmcnt(0)')
    e('v_max_f32 v13, v24, v26')
    for c in range(2, 8): e(f'v_max_f32 v13, v13, v{24+2*c}')
    for c in range(8): e(f'v_sub_f32 v{24+2*c}, v{24+2*c}, v13')
    for c in range(8): e(f'v_exp_f32 v{24+2*c}, v{24+2*c}')
    e('v_mov_b32 v40, 0'); e('v_mov_b32 v41, 0')
    for c in range(8):
        e(f'v_fmac_f32 v40, v{24+2*c}, v{25+2*c}')
        e(f'v_fmac_f32 v41, v{24+2*c}, v{16+c}')
    e('v_rcp_f32 v40, v40')
    e('s_nop 0')
    e('v_mul_f32 v41, v41, v40')
    e(f's_branch {Lj}')
    lab(Lb)
    e('s_lshr_b32 s33, s3, 2')
    e('s_and_b32 s35, s3, 3')
    e('s_lshr_b32 s37, s35, 1')
    e('s_lshl_b32 s34, s60, 1')
    e('s_add_u32 s34, s34, s37')
    e('s_lshl_b32 s36, s34, 13')
    e('s_lshl_b32 s37, s33, 9')
    e('s_add_u32 s36, s36, s37')
    e('s_and_b32 s37, s35, 1')
    e('s_lshl_b32 s37, s37, 8')
    e('s_add_u32 s36, s36, s37')
    e(f's_add_u32 s36, s36, {CTXP}')
    e('v_lshlrev_b32 v12, 2, v2')
    e('s_add_u32 s37, s36, 4096')
    for c in range(8):
        e(f'buffer_load_dword v{16+c}, v12, {WSR}, s{36 if c<4 else 37} offen offset:{(c%4)*1024} sc1')
    e('s_waitcnt vmcnt(0)')
    e('v_mov_b32 v41, v16')
    for c in range(1, 8): e(f'v_add_f32 v41, v41, v{16+c}')
    lab(Lj)
    e('v_cvt_pk_bf16_f32 v41, v41, v41')
    e('v_lshlrev_b32 v41, 16, v41')
    e('s_lshl_b32 s34, s3, 8')
    e(f's_add_u32 s34, s34, {LOV}')
    e('v_lshlrev_b32 v12, 2, v2')
    e('v_add_u32 v12, s34, v12')
    e('ds_write_b32 v12, v41')
    cbar(bark, 12, 13)
    e('s_lshl_b32 s34, s3, 5')
    e('v_lshrrev_b32 v12, 3, v2')
    e('v_add_u32 v12, s34, v12')
    e('v_lshlrev_b32 v12, 2, v12')
    e(f'v_add_u32 v12, {LOV}, v12')
    for i in range(4):
        for b in range(2):
            e(f'ds_read_b32 v{16+2*i+b}, v12 offset:{b*1024+i*32}')
    for k in range(16): e(f'v_mov_b32 v{32+k}, 0')
    e('s_waitcnt lgkmcnt(0)')
    for i in range(4):
        for j in range(4):
            unpack(12, 13, reg+4*i+j)
            for b in range(2):
                e(f'v_fmac_f32 v{32+8*b+2*j}, v{16+2*i+b}, v12')
                e(f'v_fmac_f32 v{32+8*b+2*j+1}, v{16+2*i+b}, v13')
    for k in range(16): e(f'v_add_f32_dpp v{32+k}, v{32+k}, v{32+k} row_ror:8 row_mask:0xf bank_mask:0xf')
    xrow_reduce([32+k for k in range(16)], [48+k for k in range(16)], 'add')
    e('s_lshl_b32 s34, s3, 9')
    e(f's_add_u32 s34, s34, {LRD}')
    e('v_lshlrev_b32 v12, 5, v2')
    e('v_add_u32 v12, s34, v12')
    e('s_mov_b64 exec, 0xff')
    e('ds_write_b128 v12, v[32:35]')
    e('ds_write_b128 v12, v[36:39] offset:16')
    e('ds_write_b128 v12, v[40:43] offset:256')
    e('ds_write_b128 v12, v[44:47] offset:272')
    e('s_mov_b64 exec, -1')
    last_arriver(cnt, 8, 12, 13, Ld)
    e('v_lshlrev_b32 v12, 3, v2')
    e(f'v_add_u32 v13, {LRD}, v12')
    for s in range(8): e(f'ds_read_b64 v[{16+2*s}:{17+2*s}], v13 offset:{s*512}')
    e('s_waitcnt lgkmcnt(0)')
    for s in range(1, 8):
        e(f'v_add_f32 v16, v16, v{16+2*s}'); e(f'v_add_f32 v17, v17, v{17+2*s}')
    e(f's_lshl_b32 s34, s{st}, 9')
    e(f's_add_u32 s34, s34, {OUTP}')
    e(f'buffer_store_dwordx2 v[16:17], v12, {WSR}, s34 offen sc1')
    set_flag(FLG_O, st, VT, 13)
    lab(Ld)
OSC = L_CKV + 16384
o_stage(2, 96, C_O, 4, L_OV, OSC, LF_O0)
TS()
e('s_sub_u32 s61, s2, 128')
e('s_cmp_lt_u32 s61, 32')
e('s_cbranch_scc0 L_C_not2b')
e('s_add_u32 s61, s61, 256')
o_stage(61, 112, C_O2, 5, L_OV+2048, OSC+4096, LF_O1)
lab('L_C_not2b')
TS()
e('s_sub_u32 s61, s2, 240')
e('s_cmp_lt_u32 s61, 9')
e('s_cbranch_scc0 L_C_end')
e('s_cmp_eq_u32 s3, 7')
e('s_cbranch_scc0 L_C_end')
e(f's_load_dwordx2 s[50:51], s[0:1], {KA["gate"]}')
e(f's_load_dwordx2 s[52:53], s[0:1], {KA["out"]}')
e('s_waitcnt lgkmcnt(0)')
srd(20, 50, 1152); srd(24, 52, 2304)
e('v_lshlrev_b32 v12, 1, v2')
for k in range(9):
    e(f'buffer_load_ushort v{16+k}, v12, s[20:23], 0 offen offset:{k*128}')
    e(f'buffer_load_ushort v{32+k}, v12, s[{S_X}:{S_X+3}], 0 offen offset:{k*128}')
    e(f'buffer_load_ushort v{48+k}, v12, s[{S_X}:{S_X+3}], 0 offen offset:{k*128+1152}')
get_tag(VT, 13)
e('v_mov_b32 v60, 0'); e('v_mov_b32 v61, 0')
for k in range(9):
    e(f'v_lshlrev_b32 v{16+k}, 16, v{16+k}')
    e(f'v_lshlrev_b32 v{32+k}, 16, v{32+k}')
    e(f'v_lshlrev_b32 v{48+k}, 16, v{48+k}')
    e(f'v_mul_f32 v{32+k}, v{32+k}, v{16+k}')
    e(f'v_mul_f32 v{48+k}, v{48+k}, v{16+k}')
    e(f'v_cvt_pk_bf16_f32 v62, v{32+k}, v{48+k}')
    unpack(63, 64, 62)
    e('v_add_f32 v60, v60, v63'); e('v_add_f32 v61, v61, v64')
e('s_nop 1')
row_reduce([60, 61], 'add')
xrow_reduce([60, 61], [62, 63], 'add')
e('v_cvt_pk_bf16_f32 v62, v60, v61')
unpack(60, 61, 62)
e(f's_mov_b32 s33, {f32hex(-1.4426950408889634)}')
e('v_mul_f32 v60, s33, v60'); e('v_mul_f32 v61, s33, v61')
e('v_exp_f32 v60, v60'); e('v_exp_f32 v61, v61'); e('s_nop 0')
e('v_add_f32 v60, 1.0, v60'); e('v_add_f32 v61, 1.0, v61')
e('v_rcp_f32 v60, v60'); e('v_rcp_f32 v61, v61'); e('s_nop 0')
e('v_cvt_pk_bf16_f32 v62, v60, v61')
unpack(60, 61, 62)
e('v_cmp_le_u32 vcc, 32, v2'); e('s_nop 1')
e('v_cndmask_b32 v60, v60, v61, vcc')
for m in range(2):
    def em():
        e('s_lshl_b32 s34, s61, 6')
        e(f's_add_u32 s34, s34, {FLG_O + m*144*4}')
    poll_flags(em, 16, VT, 12, 16)
e('v_lshlrev_b32 v12, 3, v2')
e('s_lshl_b32 s34, s61, 13')
e(f's_add_u32 s34, s34, {OUTP}')
for grp in range(4):
    for s in range(8):
        t = grp*8+s
        base = 16 if grp < 2 else 66
        e(f'buffer_load_dwordx2 v[{base+2*(t%16)}:{base+1+2*(t%16)}], v12, {WSR}, s34 offen offset:{s*512} sc1')
    if grp == 1: e(f's_add_u32 s34, s34, {144*512 - 4096}')
    else: e('s_add_u32 s34, s34, 4096')
e('s_waitcnt vmcnt(0)')
for s in range(1, 16):
    e(f'v_add_f32 v16, v16, v{16+2*s}'); e(f'v_add_f32 v17, v17, v{17+2*s}')
    e(f'v_add_f32 v66, v66, v{66+2*s}'); e(f'v_add_f32 v67, v67, v{67+2*s}')
e('v_cvt_pk_bf16_f32 v62, v16, v17'); unpack(16, 17, 62)
e('v_cvt_pk_bf16_f32 v62, v66, v67'); unpack(66, 67, 62)
e('v_sub_f32 v61, 1.0, v60')
e('v_cvt_pk_bf16_f32 v62, v61, v61'); e('v_lshlrev_b32 v61, 16, v62')
e('v_mul_f32 v16, v60, v16'); e('v_mul_f32 v17, v60, v17')
e('v_cvt_pk_bf16_f32 v62, v16, v17'); unpack(16, 17, 62)
e('v_mul_f32 v66, v61, v66'); e('v_mul_f32 v67, v61, v67')
e('v_cvt_pk_bf16_f32 v62, v66, v67'); unpack(66, 67, 62)
e('v_add_f32 v16, v16, v66'); e('v_add_f32 v17, v17, v67')
e('v_cvt_pk_bf16_f32 v62, v16, v17')
e('v_lshrrev_b32 v12, 5, v2')
e('v_mul_u32_u24 v12, 1152, v12')
e('v_and_b32 v13, 31, v2')
e('v_lshl_add_u32 v12, v13, 2, v12')
e('s_lshl_b32 s34, s61, 7')
e('buffer_store_dword v62, v12, s[24:27], s34 offen')
lab('L_C_end')
TS()
ts_dump()
e('s_endpgm')
lab('L_bail')
e('s_endpgm')
lab('L_exit')
e('s_endpgm')
out += ['.section .rodata,"a"', '.p2align 6', f'.amdhsa_kernel {NAME}', '  .amdhsa_next_free_vgpr 128', '  .amdhsa_next_free_sgpr 102',
  '  .amdhsa_accum_offset 128', '  .amdhsa_group_segment_fixed_size 0', '  .amdhsa_kernarg_size 120', '  .amdhsa_user_sgpr_count 2',
  '  .amdhsa_user_sgpr_kernarg_segment_ptr 1', '  .amdhsa_system_sgpr_workgroup_id_x 1', '.end_amdhsa_kernel']
open(sys.argv[1], 'w').write(HEADER + f'; @launch grid=(256,1,1) block=(1024,1,1) lds={(L_END+255)//256*256}\n' + '\n'.join(out) + '\n')
print('LDS', L_END, 'stamps', nA, ts_n[0])
```

```python
import sys, struct

HEADER = open('gated_mix__gqa_block_cached__compressed_kv_cla__decode.s.ref').read().split('; Override')[0]

QP   = 0x000000
QABS = 0x040000
AP   = 0x080000
AML  = 0x0C0000
BML  = 0x0D0000
CTXP = 0x100000
OUTP = 0x180000
BP   = 0x800000
WS_SIZE = 268435456

CSC = 0.08838834764831845 * 1.4426950408889634
def f32hex(x): return '0x%08x' % struct.unpack('<I', struct.pack('<f', x))[0]

out = []
import re
def e(s):
    m = re.search(r'offset:(\d+)', s)
    if m and s.startswith('buffer_'): assert int(m.group(1)) < 4096, s
    if m and s.startswith('ds_') and 'swizzle' not in s: assert int(m.group(1)) < 65536, s
    out.append('  ' + s)
def lab(s): out.append(s + ':')

KA = dict(A_x=0, A_k=8, A_v=16, A_wq=24, A_wo=32, B_x=40, B_ckv=48, B_wq=56, B_wuk=64, B_wuv=72, B_wo=80, gate=88, out=96, dbg=104, ws=112)

def srd(s, plo, nbytes, off=0):
    if off:
        e(f's_add_u32 s{s}, s{plo}, {off}')
        e(f's_addc_u32 s{s+1}, s{plo+1}, 0')
        e(f's_and_b32 s{s+1}, s{s+1}, 0xffff')
    else:
        e(f's_mov_b32 s{s}, s{plo}')
        e(f's_and_b32 s{s+1}, s{plo+1}, 0xffff')
    e(f's_mov_b32 s{s+2}, {nbytes}')
    e(f's_mov_b32 s{s+3}, 0x20000')

def kstart(name):
    out.append(f'.globl {name}')
    out.append('.p2align 8')
    out.append(f'.type {name},@function')
    lab(name)

kernels = []

def unpack(dst_lo, dst_hi, src):
    e(f'v_lshlrev_b32 v{dst_lo}, 16, v{src}')
    e(f'v_and_b32 v{dst_hi}, 0xffff0000, v{src}')

def lanevars():
    e('v_lshrrev_b32 v1, 6, v0')
    e('v_and_b32 v2, 63, v0')
    e('v_lshrrev_b32 v3, 4, v2')
    e('v_and_b32 v4, 15, v2')

def row_reduce(regs, op='add'):
    for sh in (8, 4, 2, 1):
        for r in regs:
            e(f'v_{op}_f32_dpp v{r}, v{r}, v{r} row_ror:{sh} row_mask:0xf bank_mask:0xf')
        if len(regs) < 3: e('s_nop 1')

def k1():
    name = 'qproj_kernel'
    kstart(name)
    e('s_cmp_ge_u32 s2, 256')
    e('s_cbranch_scc1 L_k1_end')
    e(f's_load_dwordx2 s[4:5], s[0:1], {KA["A_x"]}')
    e(f's_load_dwordx2 s[6:7], s[0:1], {KA["A_wq"]}')
    e(f's_load_dwordx2 s[8:9], s[0:1], {KA["A_x"]}')
    e(f's_load_dwordx2 s[10:11], s[0:1], {KA["B_wq"]}')
    e(f's_load_dwordx2 s[12:13], s[0:1], {KA["ws"]}')
    e('s_lshr_b32 s14, s2, 7')
    e('s_bfe_u32 s15, s2, 0x50002')
    e('s_and_b32 s16, s2, 3')
    e('s_waitcnt lgkmcnt(0)')
    e('s_cmp_eq_u32 s14, 0')
    e('s_cselect_b32 s4, s4, s8')
    e('s_cselect_b32 s5, s5, s9')
    e('s_cselect_b32 s6, s6, s10')
    e('s_cselect_b32 s7, s7, s11')
    srd(20, 4, 2304)
    srd(24, 6, 4718592)
    srd(28, 12, 0x40000, QP)
    lanevars()
    e('s_mul_i32 s17, s16, 144')
    e('v_mul_u32_u24 v5, 36, v1')
    e('v_add3_u32 v5, v5, v3, s17')
    e('v_lshlrev_b32 v6, 13, v5')
    e('s_lshl_b32 s18, s15, 8')
    e('v_lshl_add_u32 v6, v4, 4, v6')
    e('v_add_u32 v6, s18, v6')
    e('v_lshlrev_b32 v7, 1, v5')
    e('s_mov_b32 s19, 0')
    for i in range(9):
        e(f'buffer_load_dwordx4 v[{16+4*i}:{19+4*i}], v6, s[24:27], s19 offen nt')
        if i < 8: e(f's_add_u32 s19, s19, 32768')
    for i in range(9):
        for b in range(2):
            e(f'buffer_load_ushort v{60+2*i+b}, v7, s[20:23], 0 offen offset:{i*8+b*1152}')
    for j in range(16): e(f'v_mov_b32 v{80+j}, 0')
    e('s_waitcnt vmcnt(0)')
    for k in range(18): e(f'v_lshlrev_b32 v{60+k}, 16, v{60+k}')
    for i in range(9):
        for j in range(4):
            unpack(96, 97, 16+4*i+j)
            for b in range(2):
                e(f'v_fmac_f32 v{80+8*b+2*j}, v{60+2*i+b}, v96')
                e(f'v_fmac_f32 v{80+8*b+2*j+1}, v{60+2*i+b}, v97')
    e('v_lshl_add_u32 v8, v1, 2, v3')
    e('v_lshlrev_b32 v8, 10, v8')
    e('v_lshl_add_u32 v8, v4, 5, v8')
    e('ds_write_b128 v8, v[80:83]')
    e('ds_write_b128 v8, v[84:87] offset:16')
    e('ds_write_b128 v8, v[88:91] offset:512')
    e('ds_write_b128 v8, v[92:95] offset:528')
    e('s_waitcnt lgkmcnt(0)')
    e('s_barrier')
    e('v_lshlrev_b32 v9, 2, v0')
    for s in range(16):
        e(f'ds_read_b32 v{16+s}, v9 offset:{s*1024}')
    e('s_waitcnt lgkmcnt(0)')
    for s in range(1, 16):
        e(f'v_add_f32 v16, v16, v{16+s}')
    e('s_lshl_b32 s18, s2, 10')
    e('v_add_u32 v9, s18, v9')
    e(f'buffer_store_dword v16, v9, s[28:31], 0 offen')
    lab('L_k1_end')
    e('s_endpgm')
    kernels.append((name, 256, 256, 16384))

def k2():
    name = 'qabs_kernel'
    kstart(name)
    e('s_cmp_ge_u32 s2, 256')
    e('s_cbranch_scc1 L_k2_end')
    e(f's_load_dwordx2 s[6:7], s[0:1], {KA["B_wuk"]}')
    e(f's_load_dwordx2 s[12:13], s[0:1], {KA["ws"]}')
    e('s_lshr_b32 s15, s2, 3')
    e('s_and_b32 s16, s2, 7')
    e('s_waitcnt lgkmcnt(0)')
    srd(24, 6, 4194304)
    srd(28, 12, 0x40000, QP)
    srd(32, 12, 0x10000, QABS)
    lanevars()
    e('s_lshl_b32 s17, s16, 6')
    e('v_lshl_add_u32 v5, v1, 4, v3')
    e('v_add_u32 v5, s17, v5')
    e('v_lshlrev_b32 v6, 13, v5')
    e('s_lshl_b32 s18, s15, 8')
    e('v_lshl_add_u32 v6, v4, 4, v6')
    e('v_add_u32 v6, s18, v6')
    e('s_mov_b32 s19, 0')
    for i in range(4):
        e(f'buffer_load_dwordx4 v[{16+4*i}:{19+4*i}], v6, s[24:27], s19 offen nt')
        if i < 3: e(f's_add_u32 s19, s19, 32768')
    e('s_add_u32 s18, s15, 32')
    e('s_lshl_b32 s18, s18, 12')
    e('v_lshlrev_b32 v7, 5, v4')
    e('v_add_u32 v7, s18, v7')
    for kq in range(4):
        for b in range(2):
            for hf in range(2):
                r = 32 + ((kq*2+b)*2+hf)*4
                e(f'buffer_load_dwordx4 v[{r}:{r+3}], v7, s[28:31], 0 offen offset:{kq*1024+b*512+hf*16}')
    e('s_waitcnt vmcnt(0)')
    for kq in range(1, 4):
        for j in range(16):
            e(f'v_add_f32 v{32+j}, v{32+j}, v{32+kq*16+j}')
    for j in range(8):
        e(f'v_cvt_pk_bf16_f32 v{48+j}, v{32+2*j}, v{33+2*j}')
    for j in range(8):
        unpack(32+2*j, 33+2*j, 48+j)
    for i in range(4):
        for b in range(2):
            e(f'v_mov_b32 v{60+2*i+b}, 0')
        for j in range(4):
            unpack(96, 97, 16+4*i+j)
            for b in range(2):
                e(f'v_fmac_f32 v{60+2*i+b}, v{32+8*b+2*j}, v96')
                e(f'v_fmac_f32 v{60+2*i+b}, v{32+8*b+2*j+1}, v97')
    e('s_nop 1')
    row_reduce([60+k for k in range(8)])
    for k in range(4):
        e(f'v_cvt_pk_bf16_f32 v{70+k}, v{60+2*k}, v{61+2*k}')
    e('s_lshl_b32 s18, s15, 10')
    e('v_lshlrev_b32 v8, 1, v5')
    e('v_add_u32 v8, s18, v8')
    e('v_add_u32 v9, 32768, v8')
    e('v_cmp_eq_u32 vcc, 0, v4')
    e('s_and_saveexec_b64 s[36:37], vcc')
    for i in range(4):
        e(f'buffer_store_short v{70+i}, v8, s[32:35], 0 offen offset:{i*8}')
        e(f'buffer_store_short_d16_hi v{70+i}, v9, s[32:35], 0 offen offset:{i*8}')
    e('s_mov_b64 exec, s[36:37]')
    lab('L_k2_end')
    e('s_endpgm')
    kernels.append((name, 256, 256, 0))

def k3():
    name = 'attn_kernel'
    kstart(name)
    e('s_cmp_ge_u32 s2, 512')
    e('s_cbranch_scc1 L_k3_end')
    e(f's_load_dwordx2 s[4:5], s[0:1], {KA["A_k"]}')
    e(f's_load_dwordx2 s[6:7], s[0:1], {KA["A_v"]}')
    e(f's_load_dwordx2 s[8:9], s[0:1], {KA["B_ckv"]}')
    e(f's_load_dwordx2 s[12:13], s[0:1], {KA["ws"]}')
    lanevars()
    e(f's_mov_b32 s40, {f32hex(CSC)}')
    e('s_waitcnt lgkmcnt(0)')
    e('s_cmp_ge_u32 s2, 256')
    e('s_cbranch_scc1 L_k3_B')
    srd(16, 4, 33554432)
    srd(20, 6, 33554432)
    srd(24, 12, 0x40000, QP)
    srd(28, 12, 0x40000, AP)
    srd(32, 12, 0x1000, AML)
    e('s_lshl_b32 s50, s2, 17')
    e('v_lshlrev_b32 v5, 14, v1')
    e('v_lshl_add_u32 v5, v3, 8, v5')
    e('v_lshl_add_u32 v5, v4, 4, v5')
    e('v_add_u32 v5, s50, v5')
    e('s_mov_b32 s44, 0')
    e('s_mov_b32 s45, 4096')
    e('s_mov_b32 s46, 8192')
    e('s_mov_b32 s47, 12288')
    for i in range(16):
        e(f'buffer_load_dwordx4 v[{64+4*i}:{67+4*i}], v5, s[16:19], s{44+i//4} offen offset:{(i%4)*1024} nt')
    e('s_bfe_u32 s51, s2, 0x40003')
    e('s_lshr_b32 s52, s2, 7')
    e('s_lshl_b32 s53, s51, 13')
    e('s_lshl_b32 s54, s52, 9')
    e('s_add_u32 s53, s53, s54')
    e('v_lshlrev_b32 v7, 5, v4')
    e('v_add_u32 v7, s53, v7')
    e('v_add_u32 v8, 4096, v7')
    for hq in range(2):
        for kq in range(4):
            for hf in range(2):
                r = 128 + ((hq*4+kq)*2+hf)*4
                e(f'buffer_load_dwordx4 v[{r}:{r+3}], v{7+hq}, s[24:27], 0 offen offset:{kq*1024+hf*16}')
    e('s_waitcnt vmcnt(0)')
    for hq in range(2):
        for kq in range(1, 4):
            for j in range(8):
                e(f'v_add_f32 v{128+hq*32+j}, v{128+hq*32+j}, v{128+hq*32+kq*8+j}')
        for j in range(4):
            e(f'v_cvt_pk_bf16_f32 v{200+hq*4+j}, v{128+hq*32+2*j}, v{129+hq*32+2*j}')
    for i in range(16):
        e(f'buffer_load_dwordx4 v[{128+4*i}:{131+4*i}], v5, s[20:23], s{44+i//4} offen offset:{(i%4)*1024} nt')
    for k in range(32): e(f'v_mov_b32 v{16+k}, 0')
    e('s_nop 1')
    for j in range(4):
        for i in range(16):
            for hq in range(2):
                e(f'v_dot2c_f32_bf16 v{16+2*i+hq}, v{64+4*i+j}, v{200+hq*4+j}')
    e('s_nop 3')
    row_reduce([16+k for k in range(32)])
    for hq in range(2):
        e(f'v_max_f32 v{48+hq}, v{16+hq}, v{18+hq}')
        for i in range(2, 16):
            e(f'v_max_f32 v{48+hq}, v{48+hq}, v{16+2*i+hq}')
        e(f'v_mul_f32 v{48+hq}, s40, v{48+hq}')
    for i in range(16):
        for hq in range(2):
            e(f'v_fma_f32 v{16+2*i+hq}, v{16+2*i+hq}, s40, -v{48+hq}')
    for k in range(32):
        e(f'v_exp_f32 v{16+k}, v{16+k}')
    e('s_nop 0')
    for hq in range(2):
        e(f'v_add_f32 v{50+hq}, v{16+hq}, v{18+hq}')
        for i in range(2, 16):
            e(f'v_add_f32 v{50+hq}, v{50+hq}, v{16+2*i+hq}')
    for k in range(16): e(f'v_mov_b32 v{208+k}, 0')
    e('s_waitcnt vmcnt(0)')
    for i in range(16):
        for j in range(4):
            unpack(52, 53, 128+4*i+j)
            for hq in range(2):
                e(f'v_fmac_f32 v{208+hq*8+2*j}, v{16+2*i+hq}, v52')
                e(f'v_fmac_f32 v{208+hq*8+2*j+1}, v{16+2*i+hq}, v53')
    e('v_lshl_add_u32 v8, v1, 2, v3')
    e('v_lshlrev_b32 v9, 10, v8')
    e('v_lshl_add_u32 v9, v4, 5, v9')
    e('ds_write_b128 v9, v[208:211]')
    e('ds_write_b128 v9, v[212:215] offset:16')
    e('ds_write_b128 v9, v[216:219] offset:512')
    e('ds_write_b128 v9, v[220:223] offset:528')
    e('v_lshlrev_b32 v10, 4, v8')
    e('v_mov_b32 v56, v48')
    e('v_mov_b32 v57, v50')
    e('v_mov_b32 v58, v49')
    e('v_mov_b32 v59, v51')
    e('ds_write_b128 v10, v[56:59] offset:32768')
    e('s_waitcnt lgkmcnt(0)')
    e('s_barrier')
    e('v_cmp_gt_u32 vcc, 256, v0')
    e('s_and_saveexec_b64 s[36:37], vcc')
    e('s_cbranch_execz L_k3_A_done')
    e('v_lshrrev_b32 v8, 7, v0')
    e('v_lshlrev_b32 v9, 3, v8')
    for s in range(32):
        e(f'ds_read_b64 v[{64+2*s}:{65+2*s}], v9 offset:{32768+s*16}')
    e('v_lshlrev_b32 v10, 2, v0')
    for s in range(32):
        e(f'ds_read_b32 v{128+s}, v10 offset:{s*1024}')
    e('s_waitcnt lgkmcnt(0)')
    e('v_max_f32 v11, v64, v66')
    for s in range(2, 32):
        e(f'v_max_f32 v11, v11, v{64+2*s}')
    for s in range(32):
        e(f'v_sub_f32 v{64+2*s}, v{64+2*s}, v11')
    for s in range(32):
        e(f'v_exp_f32 v{64+2*s}, v{64+2*s}')
    e('v_mov_b32 v12, 0')
    e('v_mov_b32 v13, 0')
    for s in range(32):
        e(f'v_fmac_f32 v12, v{64+2*s}, v{65+2*s}')
        e(f'v_fmac_f32 v13, v{64+2*s}, v{128+s}')
    e('s_lshl_b32 s54, s2, 10')
    e('v_add_u32 v10, s54, v10')
    e('buffer_store_dword v13, v10, s[28:31], 0 offen')
    e('s_lshl_b32 s54, s2, 4')
    e('v_add_u32 v9, s54, v9')
    e('v_mov_b32 v14, v11')
    e('v_mov_b32 v15, v12')
    e('v_and_b32 v8, 127, v0')
    e('v_cmp_eq_u32 vcc, 0, v8')
    e('s_and_b64 exec, exec, vcc')
    e('buffer_store_dwordx2 v[14:15], v9, s[32:35], 0 offen')
    lab('L_k3_A_done')
    e('s_endpgm')
    lab('L_k3_B')
    e('s_sub_u32 s50, s2, 256')
    e('s_lshr_b32 s51, s50, 7')
    e('s_bfe_u32 s52, s50, 0x10006')
    e('s_and_b32 s53, s50, 63')
    srd(16, 8, 8388608)
    srd(24, 12, 0x10000, QABS)
    srd(28, 12, 0x800000, BP)
    srd(32, 12, 0x8000, BML)
    RS = 1056
    SB = 0
    PB = SB + 8192
    CKB = 10752
    e('s_lshl_b32 s54, s51, 22')
    e('s_lshl_b32 s55, s53, 16')
    e('s_add_u32 s54, s54, s55')
    e('v_lshlrev_b32 v5, 13, v1')
    e('v_lshl_add_u32 v5, v2, 4, v5')
    e('v_add_u32 v5, s54, v5')
    e('s_movk_i32 s44, 0x1000')
    for i in range(8):
        if i < 4: e(f'buffer_load_dwordx4 v[{64+4*i}:{67+4*i}], v5, s[16:19], 0 offen offset:{i*1024} nt')
        else:     e(f'buffer_load_dwordx4 v[{64+4*i}:{67+4*i}], v5, s[16:19], s44 offen offset:{(i-4)*1024} nt')
    e('s_lshl_b32 s54, s51, 5')
    e('s_lshl_b32 s55, s52, 4')
    e('s_add_u32 s54, s54, s55')
    e('v_add_u32 v6, s54, v4')
    e('v_lshlrev_b32 v6, 10, v6')
    e('v_lshrrev_b32 v7, 2, v1')
    e('v_and_b32 v8, 3, v1')
    e('v_lshl_add_u32 v6, v7, 9, v6')
    e('v_lshl_add_u32 v6, v3, 4, v6')
    for ks in range(8):
        e(f'buffer_load_dwordx4 v[{128+4*ks}:{131+4*ks}], v6, s[24:27], 0 offen offset:{ks*64} nt')
    e(f'v_mul_u32_u24 v9, {8*RS}, v1')
    e('v_lshl_add_u32 v9, v2, 4, v9')
    e(f'v_add_u32 v9, {CKB}, v9')
    e('s_waitcnt vmcnt(8)')
    for i in range(8):
        e(f'ds_write_b128 v9, v[{64+4*i}:{67+4*i}] offset:{i*RS}')
    e('s_waitcnt vmcnt(0) lgkmcnt(0)')
    e('s_barrier')
    e('v_lshl_add_u32 v10, v8, 4, v4')
    e(f'v_mul_u32_u24 v10, {RS}, v10')
    e('v_lshl_add_u32 v10, v7, 9, v10')
    e('v_lshl_add_u32 v10, v3, 4, v10')
    e(f'v_add_u32 v10, {CKB}, v10')
    for ks in range(8):
        e(f'ds_read_b128 v[{64+4*ks}:{67+4*ks}], v10 offset:{ks*64}')
    for k in range(4): e(f'v_mov_b32 v{16+k}, 0')
    e('s_waitcnt lgkmcnt(0)')
    for ks in range(8):
        e(f'v_mfma_f32_16x16x32_bf16 v[16:19], v[{64+4*ks}:{67+4*ks}], v[{128+4*ks}:{131+4*ks}], v[16:19]')
    e('s_nop 15')
    e('v_lshlrev_b32 v11, 12, v7')
    e('v_lshl_add_u32 v11, v4, 8, v11')
    e('v_lshl_add_u32 v11, v8, 6, v11')
    e('v_lshl_add_u32 v11, v3, 4, v11')
    e(f'ds_write_b128 v11, v[16:19] offset:{SB}')
    e('s_waitcnt lgkmcnt(0)')
    e('s_barrier')
    e('v_lshrrev_b32 v12, 5, v2')
    e('v_lshl_add_u32 v12, v1, 1, v12')
    e('v_and_b32 v13, 31, v2')
    e('v_lshlrev_b32 v14, 8, v12')
    e('v_lshl_add_u32 v14, v13, 3, v14')
    e(f'ds_read_b64 v[16:17], v14 offset:{SB}')
    e(f'ds_read_b64 v[18:19], v14 offset:{SB+4096}')
    e('s_waitcnt lgkmcnt(0)')
    e('v_add_f32 v16, v16, v18')
    e('v_add_f32 v17, v17, v19')
    e('v_max_f32 v20, v16, v17')
    e('s_nop 1')
    row_reduce([20], 'max')
    e('ds_swizzle_b32 v21, v20 offset:0x401F')
    e('s_waitcnt lgkmcnt(0)')
    e('v_max_f32 v20, v20, v21')
    e('v_mul_f32 v20, s40, v20')
    e('v_fma_f32 v16, v16, s40, -v20')
    e('v_fma_f32 v17, v17, s40, -v20')
    e('v_exp_f32 v16, v16')
    e('v_exp_f32 v17, v17')
    e('s_nop 0')
    e('v_add_f32 v22, v16, v17')
    e('v_cvt_pk_bf16_f32 v23, v16, v17')
    e('s_nop 0')
    row_reduce([22], 'add')
    e('ds_swizzle_b32 v21, v22 offset:0x401F')
    e('v_mul_u32_u24 v15, 144, v12')
    e('v_lshl_add_u32 v15, v13, 2, v15')
    e(f'ds_write_b32 v15, v23 offset:{PB}')
    e('s_waitcnt lgkmcnt(0)')
    e('v_add_f32 v21, v22, v21')
    e('s_lshl_b32 s54, s50, 7')
    e('v_lshlrev_b32 v24, 3, v12')
    e('v_add_u32 v24, s54, v24')
    e('v_cmp_eq_u32 vcc, 0, v13')
    e('s_and_saveexec_b64 s[36:37], vcc')
    e('buffer_store_dwordx2 v[20:21], v24, s[32:35], 0 offen')
    e('s_mov_b64 exec, s[36:37]')
    e('s_barrier')
    e('v_mul_u32_u24 v25, 144, v4')
    e('v_lshl_add_u32 v25, v3, 4, v25')
    e(f'ds_read_b128 v[64:67], v25 offset:{PB}')
    e(f'ds_read_b128 v[68:71], v25 offset:{PB+64}')
    e('v_lshrrev_b32 v26, 2, v4')
    e('v_lshl_add_u32 v26, v3, 3, v26')
    e(f'v_mul_u32_u24 v26, {RS}, v26')
    e('v_and_b32 v27, 3, v4')
    e('v_lshl_add_u32 v26, v27, 3, v26')
    e('v_lshl_add_u32 v26, v1, 7, v26')
    e(f'v_add_u32 v26, {CKB}, v26')
    for ct in range(4):
        for ks in range(2):
            for t in range(2):
                r = 128 + ((ct*2+ks)*2+t)*2
                e(f'ds_read_b64_tr_b16 v[{r}:{r+1}], v26 offset:{(ks*32+t*4)*RS + ct*32}')
    for k in range(16): e(f'v_mov_b32 v{32+k}, 0')
    e('s_waitcnt lgkmcnt(0)')
    for ct in range(4):
        for ks in range(2):
            r = 128 + (ct*2+ks)*4
            e(f'v_mfma_f32_16x16x32_bf16 v[{32+4*ct}:{35+4*ct}], v[{r}:{r+3}], v[{64+4*ks}:{67+4*ks}], v[{32+4*ct}:{35+4*ct}]')
    e('s_nop 15')
    e('s_lshl_b32 s54, s50, 15')
    e('v_lshlrev_b32 v28, 11, v4')
    e('v_lshl_add_u32 v28, v1, 8, v28')
    e('v_lshl_add_u32 v28, v3, 4, v28')
    e('v_add_u32 v28, s54, v28')
    for ct in range(4):
        e(f'buffer_store_dwordx4 v[{32+4*ct}:{35+4*ct}], v28, s[28:31], 0 offen offset:{ct*64}')
    lab('L_k3_end')
    e('s_endpgm')
    kernels.append((name, 512, 512, 81920))

def k4():
    name = 'uv_kernel'
    kstart(name)
    e('s_cmp_ge_u32 s2, 256')
    e('s_cbranch_scc1 L_k4_end')
    e(f's_load_dwordx2 s[6:7], s[0:1], {KA["B_wuv"]}')
    e(f's_load_dwordx2 s[12:13], s[0:1], {KA["ws"]}')
    e('s_lshr_b32 s15, s2, 3')
    e('s_and_b32 s16, s2, 7')
    e('s_waitcnt lgkmcnt(0)')
    srd(24, 6, 4194304)
    srd(28, 12, 0x800000, BP)
    srd(32, 12, 0x8000, BML)
    srd(40, 12, 0x40000, CTXP)
    lanevars()
    e('s_lshl_b32 s17, s16, 6')
    e('v_lshl_add_u32 v5, v1, 4, v3')
    e('v_add_u32 v5, s17, v5')
    e('v_lshlrev_b32 v6, 13, v5')
    e('s_lshl_b32 s18, s15, 8')
    e('v_lshl_add_u32 v6, v4, 4, v6')
    e('v_add_u32 v6, s18, v6')
    e('s_mov_b32 s19, 0')
    for i in range(4):
        e(f'buffer_load_dwordx4 v[{16+4*i}:{19+4*i}], v6, s[24:27], s19 offen nt')
        if i < 3: e(f's_add_u32 s19, s19, 32768')
    e('s_lshr_b32 s20, s15, 4')
    e('s_and_b32 s21, s15, 15')
    e('v_lshrrev_b32 v7, 1, v1')
    e('v_lshlrev_b32 v8, 1, v7')
    e('v_add_u32 v8, s20, v8')
    e('v_lshl_add_u32 v9, v8, 6, v2')
    e('v_lshlrev_b32 v9, 4, v9')
    e('v_add_u32 v9, s21, v9')
    e('v_lshlrev_b32 v9, 3, v9')
    e('buffer_load_dwordx2 v[40:41], v9, s[32:35], 0 offen')
    e('v_and_b32 v10, 1, v1')
    e('v_lshl_add_u32 v10, v10, 5, v3')
    e('v_lshl_add_u32 v11, v8, 6, v10')
    e('v_lshlrev_b32 v11, 4, v11')
    e('v_add_u32 v11, s21, v11')
    e('v_lshlrev_b32 v11, 11, v11')
    e('s_lshl_b32 s22, s16, 8')
    e('v_lshl_add_u32 v11, v4, 4, v11')
    e('v_add_u32 v11, s22, v11')
    e('s_mov_b32 s19, 0')
    for i in range(8):
        e(f'buffer_load_dwordx4 v[{64+4*i}:{67+4*i}], v11, s[28:31], s19 offen')
        if i < 7: e(f's_add_u32 s19, s19, {4*16*2048}')
    e('s_waitcnt vmcnt(8)')
    e('v_mov_b32 v42, v40')
    e('s_nop 1')
    row_reduce([42], 'max')
    e('ds_swizzle_b32 v43, v42 offset:0x401F')
    e('s_waitcnt lgkmcnt(0)')
    e('v_max_f32 v42, v42, v43')
    e('v_mov_b32 v43, v42')
    e('s_nop 1')
    e('v_permlane32_swap_b32 v42, v43')
    e('s_nop 1')
    e('v_max_f32 v42, v42, v43')
    e('v_sub_f32 v40, v40, v42')
    e('v_exp_f32 v40, v40')
    e('s_nop 0')
    e('v_mul_f32 v44, v40, v41')
    e('s_nop 1')
    row_reduce([44], 'add')
    e('ds_swizzle_b32 v43, v44 offset:0x401F')
    e('s_waitcnt lgkmcnt(0)')
    e('v_add_f32 v44, v44, v43')
    e('v_mov_b32 v43, v44')
    e('s_nop 1')
    e('v_permlane32_swap_b32 v44, v43')
    e('s_nop 1')
    e('v_add_f32 v44, v44, v43')
    e('v_rcp_f32 v44, v44')
    e('s_nop 0')
    e('v_mul_f32 v40, v40, v44')
    for i in range(8):
        e(f'v_add_u32 v45, {4*i}, v10')
        e('v_lshlrev_b32 v45, 2, v45')
        e(f'ds_bpermute_b32 v{48+i}, v45, v40')
    e('s_waitcnt vmcnt(0) lgkmcnt(0)')
    for k in range(4): e(f'v_mov_b32 v{56+k}, 0')
    for i in range(8):
        for k in range(4):
            e(f'v_fmac_f32 v{56+k}, v{48+i}, v{64+4*i+k}')
    e('v_lshl_add_u32 v12, v1, 2, v3')
    e('v_lshlrev_b32 v12, 8, v12')
    e('v_lshl_add_u32 v12, v4, 4, v12')
    e('ds_write_b128 v12, v[56:59]')
    e('s_waitcnt lgkmcnt(0)')
    e('s_barrier')
    e('v_lshl_add_u32 v13, v1, 4, v3')
    e('v_lshlrev_b32 v13, 2, v13')
    for i in range(4):
        for b in range(2):
            for s in range(8):
                e(f'ds_read_b32 v{64+(i*2+b)*8+s}, v13 offset:{(b*8+s)*256+i*16}')
    e('s_waitcnt lgkmcnt(0)')
    for ib in range(8):
        for s in range(1, 8):
            e(f'v_add_f32 v{64+ib*8}, v{64+ib*8}, v{64+ib*8+s}')
    for j in range(16): e(f'v_mov_b32 v{128+j}, 0')
    for i in range(4):
        for j in range(4):
            unpack(96+40, 97+40, 16+4*i+j) if False else None
            e(f'v_lshlrev_b32 v146, 16, v{16+4*i+j}')
            e(f'v_and_b32 v147, 0xffff0000, v{16+4*i+j}')
            for b in range(2):
                e(f'v_fmac_f32 v{128+8*b+2*j}, v{64+(i*2+b)*8}, v146')
                e(f'v_fmac_f32 v{128+8*b+2*j+1}, v{64+(i*2+b)*8}, v147')
    e('v_lshl_add_u32 v8, v1, 2, v3')
    e('v_lshlrev_b32 v8, 10, v8')
    e('v_lshl_add_u32 v8, v4, 5, v8')
    e('ds_write_b128 v8, v[128:131] offset:4096')
    e('ds_write_b128 v8, v[132:135] offset:4112')
    e('ds_write_b128 v8, v[136:139] offset:4608')
    e('ds_write_b128 v8, v[140:143] offset:4624')
    e('s_waitcnt lgkmcnt(0)')
    e('s_barrier')
    e('v_lshlrev_b32 v9, 2, v0')
    for s in range(16):
        e(f'ds_read_b32 v{16+s}, v9 offset:{4096+s*1024}')
    e('s_waitcnt lgkmcnt(0)')
    for s in range(1, 16):
        e(f'v_add_f32 v16, v16, v{16+s}')
    e('s_lshl_b32 s18, s2, 10')
    e('v_add_u32 v9, s18, v9')
    e(f'buffer_store_dword v16, v9, s[40:43], 0 offen')
    lab('L_k4_end')
    e('s_endpgm')
    kernels.append((name, 256, 256, 4096+16384))

def k5():
    name = 'oproj_kernel'
    kstart(name)
    e('s_cmp_ge_u32 s2, 288')
    e('s_cbranch_scc1 L_k5_end')
    e(f's_load_dwordx2 s[4:5], s[0:1], {KA["A_wo"]}')
    e(f's_load_dwordx2 s[6:7], s[0:1], {KA["B_wo"]}')
    e(f's_load_dwordx2 s[12:13], s[0:1], {KA["ws"]}')
    e('s_cmp_ge_u32 s2, 144')
    e('s_cselect_b32 s14, 1, 0')
    e('s_mul_i32 s15, s14, 144')
    e('s_sub_u32 s15, s2, s15')
    e('s_lshr_b32 s16, s15, 4')
    e('s_and_b32 s17, s15, 15')
    e('s_waitcnt lgkmcnt(0)')
    e('s_cmp_eq_u32 s14, 0')
    e('s_cselect_b32 s4, s4, s6')
    e('s_cselect_b32 s5, s5, s7')
    srd(24, 4, 4718592)
    srd(28, 12, 0x40000, AP)
    srd(32, 12, 0x1000, AML)
    srd(40, 12, 0x40000, CTXP)
    srd(44, 12, 0x40000, OUTP)
    e('v_lshrrev_b32 v1, 6, v0')
    e('v_and_b32 v2, 63, v0')
    e('v_lshrrev_b32 v3, 3, v2')
    e('v_and_b32 v4, 7, v2')
    e('s_lshl_b32 s18, s17, 8')
    e('v_lshl_add_u32 v5, v1, 6, v3')
    e('v_add_u32 v6, s18, v5')
    e('s_movk_i32 s19, 1152')
    e('v_mul_lo_u32 v6, v6, s19')
    e('s_lshl_b32 s20, s16, 7')
    e('v_lshl_add_u32 v6, v4, 4, v6')
    e('v_add_u32 v6, s20, v6')
    e('s_mov_b32 s19, 0')
    for i in range(8):
        e(f'buffer_load_dwordx4 v[{16+4*i}:{19+4*i}], v6, s[24:27], s19 offen nt')
        if i < 7: e(f's_add_u32 s19, s19, {8*1152}')
    e('s_cmp_eq_u32 s14, 0')
    e('s_cbranch_scc0 L_k5_B')
    for b in range(2):
        e(f's_add_u32 s21, s17, {b*16}')
        e('s_lshl_b32 s22, s21, 13')
        e('v_lshlrev_b32 v7, 2, v0')
        e('v_add_u32 v7, s22, v7')
        e('s_movk_i32 s23, 0x1000')
        for c in range(8):
            e(f'buffer_load_dword v{64+c}, v7, s[28:31], {"0" if c<4 else "s23"} offen offset:{(c%4)*1024}')
        e('s_lshl_b32 s22, s21, 7')
        e('v_lshrrev_b32 v8, 7, v0')
        e('v_lshlrev_b32 v8, 3, v8')
        e('v_add_u32 v8, s22, v8')
        for c in range(8):
            e(f'buffer_load_dwordx2 v[{72+2*c}:{73+2*c}], v8, s[32:35], 0 offen offset:{c*16}')
        e('s_waitcnt vmcnt(0)')
        e('v_max_f32 v9, v72, v74')
        for c in range(2, 8): e(f'v_max_f32 v9, v9, v{72+2*c}')
        for c in range(8): e(f'v_sub_f32 v{72+2*c}, v{72+2*c}, v9')
        for c in range(8): e(f'v_exp_f32 v{72+2*c}, v{72+2*c}')
        e('v_mov_b32 v10, 0')
        e('v_mov_b32 v11, 0')
        for c in range(8):
            e(f'v_fmac_f32 v10, v{72+2*c}, v{73+2*c}')
            e(f'v_fmac_f32 v11, v{72+2*c}, v{64+c}')
        e('v_rcp_f32 v10, v10')
        e('s_nop 0')
        e(f'v_mul_f32 v{90+b}, v11, v10')
    e('s_branch L_k5_J')
    lab('L_k5_B')
    e('v_lshrrev_b32 v8, 7, v0')
    e('s_lshl_b32 s21, s17, 1')
    e('v_add_u32 v8, s21, v8')
    e('v_lshlrev_b32 v8, 13, v8')
    e('v_and_b32 v9, 127, v0')
    e('v_lshl_add_u32 v8, v9, 2, v8')
    e('s_mov_b32 s19, 0')
    for cs in range(8):
        e(f'buffer_load_dword v{64+2*cs}, v8, s[40:43], s19 offen')
        e(f'buffer_load_dword v{65+2*cs}, v8, s[40:43], s19 offen offset:512')
        if cs < 7: e('s_add_u32 s19, s19, 1024')
    e('s_waitcnt vmcnt(0)')
    for cs in range(1, 8):
        e(f'v_add_f32 v64, v64, v{64+2*cs}')
        e(f'v_add_f32 v65, v65, v{65+2*cs}')
    e('v_mov_b32 v90, v64')
    e('v_mov_b32 v91, v65')
    lab('L_k5_J')
    e('v_cvt_pk_bf16_f32 v92, v90, v91')
    unpack(90, 91, 92)
    e('v_lshlrev_b32 v7, 2, v0')
    e('ds_write_b32 v7, v90')
    e('ds_write_b32 v7, v91 offset:1024')
    e('s_waitcnt vmcnt(0) lgkmcnt(0)')
    e('s_barrier')
    e('v_lshlrev_b32 v8, 2, v5')
    for i in range(8):
        for b in range(2):
            e(f'ds_read_b32 v{64+2*i+b}, v8 offset:{b*1024+i*32}')
    for j in range(16): e(f'v_mov_b32 v{80+j}, 0')
    e('s_waitcnt lgkmcnt(0)')
    for i in range(8):
        for j in range(4):
            unpack(96, 97, 16+4*i+j)
            for b in range(2):
                e(f'v_fmac_f32 v{80+8*b+2*j}, v{64+2*i+b}, v96')
                e(f'v_fmac_f32 v{80+8*b+2*j+1}, v{64+2*i+b}, v97')
    e('v_lshl_add_u32 v8, v1, 3, v3')
    e('v_lshlrev_b32 v8, 9, v8')
    e('v_lshl_add_u32 v8, v4, 5, v8')
    e('ds_write_b128 v8, v[80:83] offset:2048')
    e('ds_write_b128 v8, v[84:87] offset:2064')
    e('ds_write_b128 v8, v[88:91] offset:2304')
    e('ds_write_b128 v8, v[92:95] offset:2320')
    e('s_waitcnt lgkmcnt(0)')
    e('s_barrier')
    e('v_cmp_gt_u32 vcc, 128, v0')
    e('s_and_saveexec_b64 s[36:37], vcc')
    e('s_cbranch_execz L_k5_end')
    e('v_lshlrev_b32 v9, 2, v0')
    for s in range(32):
        e(f'ds_read_b32 v{16+s}, v9 offset:{2048+s*512}')
    e('s_waitcnt lgkmcnt(0)')
    for s in range(1, 32):
        e(f'v_add_f32 v16, v16, v{16+s}')
    e('s_lshl_b32 s18, s14, 4')
    e('s_add_u32 s18, s18, s17')
    e('s_mul_i32 s18, s18, 4608')
    e('s_lshl_b32 s19, s16, 8')
    e('s_add_u32 s18, s18, s19')
    e('v_lshrrev_b32 v10, 6, v0')
    e('v_mul_u32_u24 v10, 2304, v10')
    e('v_and_b32 v11, 63, v0')
    e('v_lshl_add_u32 v10, v11, 2, v10')
    e('v_add_u32 v10, s18, v10')
    e('buffer_store_dword v16, v10, s[44:47], 0 offen')
    lab('L_k5_end')
    e('s_endpgm')
    kernels.append((name, 288, 256, 2048+16384))

def k6():
    name = 'final_kernel'
    kstart(name)
    e('s_cmp_ge_u32 s2, 5')
    e('s_cbranch_scc1 L_k6_end')
    e(f's_load_dwordx2 s[4:5], s[0:1], {KA["A_x"]}')
    e(f's_load_dwordx2 s[6:7], s[0:1], {KA["gate"]}')
    e(f's_load_dwordx2 s[8:9], s[0:1], {KA["out"]}')
    e(f's_load_dwordx2 s[12:13], s[0:1], {KA["ws"]}')
    e('s_waitcnt lgkmcnt(0)')
    srd(20, 4, 2304)
    srd(24, 6, 1152)
    srd(28, 8, 2304)
    srd(44, 12, 0x40000, OUTP)
    e('v_and_b32 v2, 63, v0')
    e('v_lshlrev_b32 v3, 1, v2')
    for k in range(9):
        e(f'buffer_load_ushort v{16+k}, v3, s[24:27], 0 offen offset:{k*128}')
        e(f'buffer_load_ushort v{32+k}, v3, s[20:23], 0 offen offset:{k*128}')
        e(f'buffer_load_ushort v{48+k}, v3, s[20:23], 0 offen offset:{k*128+1152}')
    e('s_lshl_b32 s14, s2, 8')
    e('v_add_u32 v4, s14, v0')
    e('v_cmp_le_u32 vcc, 576, v4')
    e('s_nop 1')
    e('v_cndmask_b32 v5, 0, 1, vcc')
    e('v_mul_u32_u24 v6, 576, v5')
    e('v_sub_u32 v6, v4, v6')
    e('v_mul_u32_u24 v7, 2304, v5')
    e('v_lshl_add_u32 v7, v6, 2, v7')
    e('s_mov_b32 s15, 0')
    for k in range(32):
        e(f'buffer_load_dword v{64+k}, v7, s[44:47], s15 offen')
        if k < 31: e('s_add_u32 s15, s15, 4608')
    e('s_waitcnt vmcnt(0)')
    e('v_mov_b32 v100, 0')
    e('v_mov_b32 v101, 0')
    for k in range(9):
        e(f'v_lshlrev_b32 v{16+k}, 16, v{16+k}')
        e(f'v_lshlrev_b32 v{32+k}, 16, v{32+k}')
        e(f'v_lshlrev_b32 v{48+k}, 16, v{48+k}')
        e(f'v_mul_f32 v{32+k}, v{32+k}, v{16+k}')
        e(f'v_mul_f32 v{48+k}, v{48+k}, v{16+k}')
        e(f'v_cvt_pk_bf16_f32 v102, v{32+k}, v{48+k}')
        unpack(103, 104, 102)
        e('v_add_f32 v100, v100, v103')
        e('v_add_f32 v101, v101, v104')
    e('s_nop 1')
    row_reduce([100, 101], 'add')
    for r in (100, 101):
        e(f'ds_swizzle_b32 v102, v{r} offset:0x401F')
        e('s_waitcnt lgkmcnt(0)')
        e(f'v_add_f32 v{r}, v{r}, v102')
        e(f'v_mov_b32 v102, v{r}')
        e('s_nop 1')
        e(f'v_permlane32_swap_b32 v{r}, v102')
        e('s_nop 1')
        e(f'v_add_f32 v{r}, v{r}, v102')
    e('v_cvt_pk_bf16_f32 v102, v100, v101')
    unpack(100, 101, 102)
    e(f's_mov_b32 s16, {f32hex(-1.4426950408889634)}')
    e('v_mul_f32 v100, s16, v100')
    e('v_mul_f32 v101, s16, v101')
    e('v_exp_f32 v100, v100')
    e('v_exp_f32 v101, v101')
    e('s_nop 0')
    e('v_add_f32 v100, 1.0, v100')
    e('v_add_f32 v101, 1.0, v101')
    e('v_rcp_f32 v100, v100')
    e('v_rcp_f32 v101, v101')
    e('s_nop 0')
    e('v_cvt_pk_bf16_f32 v102, v100, v101')
    unpack(100, 101, 102)
    e('v_cndmask_b32 v105, v100, v101, vcc')
    for k in range(1, 16):
        e(f'v_add_f32 v64, v64, v{64+k}')
        e(f'v_add_f32 v80, v80, v{80+k}')
    e('v_cvt_pk_bf16_f32 v102, v64, v80')
    unpack(64, 80, 102)
    e('v_sub_f32 v106, 1.0, v105')
    e('v_mul_f32 v107, v105, v64')
    e('v_cvt_pk_bf16_f32 v102, v106, v107')
    unpack(106, 107, 102)
    e('v_mul_f32 v108, v106, v80')
    e('v_cvt_pk_bf16_f32 v102, v108, v108')
    e('v_lshlrev_b32 v108, 16, v102')
    e('v_add_f32 v109, v107, v108')
    e('v_cvt_pk_bf16_f32 v102, v109, v109')
    e('v_lshlrev_b32 v8, 1, v4')
    e('buffer_store_short v102, v8, s[28:31], 0 offen')
    lab('L_k6_end')
    e('s_endpgm')
    kernels.append((name, 5, 256, 0))

out.append('.amdgcn_target "amdgcn-amd-amdhsa--gfx950"')
out.append('.text')
for f in (k1, k2, k3, k4, k5, k6): f()
out.append('.section .rodata,"a"')
for (name, g, b, lds) in kernels:
    out.append('.p2align 6')
    out.append(f'.amdhsa_kernel {name}')
    out.append('  .amdhsa_next_free_vgpr 256')
    out.append('  .amdhsa_next_free_sgpr 102')
    out.append('  .amdhsa_accum_offset 256')
    out.append('  .amdhsa_group_segment_fixed_size 0')
    out.append('  .amdhsa_kernarg_size 120')
    out.append('  .amdhsa_user_sgpr_count 2')
    out.append('  .amdhsa_user_sgpr_kernarg_segment_ptr 1')
    out.append('  .amdhsa_system_sgpr_workgroup_id_x 1')
    out.append('.end_amdhsa_kernel')
hdr = HEADER
for (name, g, b, lds) in kernels:
    hdr += f'; @launch kernel={name} grid=({g},1,1) block=({b},1,1) lds={lds}\n'
open(sys.argv[1], 'w').write(hdr + '\n'.join(out) + '\n')
```

```python
import sys, struct, re, os

REF = open('gated_mix__gqa_block_cached__compressed_kv_cla__decode.s.ref').read()
HEADER = REF.split('; Override')[0]
NAME = 'gated_mix__gqa_block_cached__compressed_kv_cla__decode_kernel'
TSTAMP = int(os.environ.get('TSTAMP', '0'))
KDEPTH = int(os.environ.get('KDEPTH', '4'))
VDEPTH = int(os.environ.get('VDEPTH', '4'))
NOA = int(os.environ.get('NOA', '0'))
SLEEP = int(os.environ.get('SLEEP', '2'))

FLG_Q, FLG_U, FLG_BP, FLG_V, FLG_AP, FLG_O = [0xC00000 + k*0x10000 for k in range(6)]
FS = 7
QP   = 0x010000
QABS = 0x090000
AP   = 0x0B0000
AML  = 0x130000
BML  = 0x140000
CTXP = 0x150000
OUTP = 0x1D0000
TSB  = 0x280000
BP   = 0x400000
WS_USED = 0xD00000

CSC = 0.08838834764831845 * 1.4426950408889634
def f32hex(x): return '0x%08x' % struct.unpack('<I', struct.pack('<f', x))[0]

out = []
def e(s):
    m = re.search(r'offset:(\d+)', s)
    if m and s.startswith('buffer_'): assert int(m.group(1)) < 4096, s
    if m and s.startswith('ds_') and 'swizzle' not in s: assert int(m.group(1)) < 65536, s
    out.append('  ' + s)
def lab(s): out.append(s + ':')
_uid = [0]
def uid(p):
    _uid[0] += 1
    return f'L_{p}_{_uid[0]}'

KA = dict(A_x=0, A_k=8, A_v=16, A_wq=24, A_wo=32, B_x=40, B_ckv=48, B_wq=56, B_wuk=64, B_wuv=72, B_wo=80, gate=88, out=96, dbg=104, ws=112)

def srd(s, plo, nbytes):
    e(f's_mov_b32 s{s}, s{plo}')
    e(f's_and_b32 s{s+1}, s{plo+1}, 0xffff')
    e(f's_mov_b32 s{s+2}, {nbytes}')
    e(f's_mov_b32 s{s+3}, 0x20000')

def unpack(lo, hi, src):
    e(f'v_lshlrev_b32 v{lo}, 16, v{src}')
    e(f'v_and_b32 v{hi}, 0xffff0000, v{src}')

def row_reduce(regs, op='add'):
    for sh in (8, 4, 2, 1):
        for r in regs:
            e(f'v_{op}_f32_dpp v{r}, v{r}, v{r} row_ror:{sh} row_mask:0xf bank_mask:0xf')
        if len(regs) < 3: e('s_nop 1')

def xrow_reduce(regs, tmp, op='add'):
    for r, t in zip(regs, tmp): e(f'v_mov_b32 v{t}, v{r}')
    if len(regs) < 2: e('s_nop 1')
    for r, t in zip(regs, tmp): e(f'v_permlane16_swap_b32 v{r}, v{t}')
    if len(regs) < 2: e('s_nop 1')
    for r, t in zip(regs, tmp): e(f'v_{op}_f32 v{r}, v{r}, v{t}')
    for r, t in zip(regs, tmp): e(f'v_mov_b32 v{t}, v{r}')
    if len(regs) < 2: e('s_nop 1')
    for r, t in zip(regs, tmp): e(f'v_permlane32_swap_b32 v{r}, v{t}')
    if len(regs) < 2: e('s_nop 1')
    for r, t in zip(regs, tmp): e(f'v_{op}_f32 v{r}, v{r}, v{t}')

S_WS, S_DBG, S_X = 4, 8, 12
WSR = f's[{S_WS}:{S_WS+3}]'
STAG = 39
ts_n = [0]
def TS():
    if TSTAMP:
        k = ts_n[0]; ts_n[0] += 1
        assert k < 10
        e(f's_memrealtime s[{64+2*k}:{65+2*k}]')

def ts_dump():
    if not TSTAMP: return
    e('s_waitcnt lgkmcnt(0)')
    e('s_lshl_b32 s32, s2, 4'); e('s_add_u32 s32, s32, s63'); e('s_lshl_b32 s32, s32, 7'); e(f's_add_u32 s32, s32, {TSB}')
    e('s_mov_b64 exec, 1')
    e('v_mov_b32 v2, 0')
    for k in range(ts_n[0]):
        e(f'v_mov_b32 v4, s{64+2*k}'); e(f'v_mov_b32 v5, s{65+2*k}')
        e(f'buffer_store_dwordx2 v[4:5], v2, {WSR}, s32 offen offset:{k*8}')
        e('s_nop 1')
    e('s_mov_b64 exec, -1')

C_Q, C_U, C_BP, C_V, C_A, C_O, C_O2 = 0, 4, 8, 12, 16, 20, 24
C_BAR = 64
L_FLG = 128
L_QA   = 256
L_QB   = L_QA + 512
L_UO   = L_QB + 1024
L_BST  = L_UO + 256
L_AML  = L_BST + 256
L_AO   = L_AML + 256
L_P    = L_AO + 8192
L_OV   = L_P + 4608
L_RED  = L_OV + 4096
QS = 1040
L_QABS = L_RED + 24576
L_S    = L_QABS + 32*QS
L_CKV  = L_S + 8192
RS = 1056
L_END  = L_CKV + 64*RS
assert L_END <= 163840, L_END
L_BPS = L_RED
assert L_S + 8192 - L_RED >= 65536

def spin_guard():
    e('s_add_u32 s62, s62, 1')
    e('s_cmp_gt_u32 s62, 0x1000000')
    e('s_cbranch_scc1 L_bail')

def cbar(k, va, vt, st=32):
    L = uid('cbar')
    e('s_waitcnt lgkmcnt(0)')
    e(f'v_mov_b32 v{va}, {C_BAR + 4*k}')
    e(f'v_mov_b32 v{vt}, 1')
    e('s_mov_b64 exec, 1')
    e(f'ds_add_u32 v{va}, v{vt}')
    e('s_mov_b64 exec, -1')
    lab(L)
    e(f'ds_read_b32 v{vt}, v{va}')
    e('s_waitcnt lgkmcnt(0)')
    e(f'v_readfirstlane_b32 s{st}, v{vt}')
    e('s_nop 0')
    e(f's_cmp_ge_u32 s{st}, 8')
    e(f's_cbranch_scc1 {L}_d')
    spin_guard()
    e('s_sleep 0')
    e(f's_branch {L}')
    lab(L + '_d')

def lds_wait(idx, va, vt, st=32):
    L = uid('lw')
    e(f'v_mov_b32 v{va}, {L_FLG + 4*idx}')
    lab(L)
    e(f'ds_read_b32 v{vt}, v{va}')
    e('s_waitcnt lgkmcnt(0)')
    e(f'v_readfirstlane_b32 s{st}, v{vt}')
    e('s_nop 0')
    e(f's_cmp_lg_u32 s{st}, 0')
    e(f's_cbranch_scc1 {L}_d')
    spin_guard()
    e('s_sleep 1')
    e(f's_branch {L}')
    lab(L + '_d')

def lds_set(idx, va, vt):
    e('s_waitcnt lgkmcnt(0)')
    e(f'v_mov_b32 v{va}, {L_FLG + 4*idx}')
    e(f'v_mov_b32 v{vt}, 1')
    e(f'ds_write_b32 v{va}, v{vt}')

def last_arriver(cnt, n, va, vt, skip_label, st=32):
    e('s_waitcnt lgkmcnt(0)')
    e(f'v_mov_b32 v{va}, {cnt}')
    e(f'v_mov_b32 v{vt}, 1')
    e('s_mov_b64 exec, 1')
    e(f'ds_add_rtn_u32 v{vt}, v{va}, v{vt}')
    e('s_waitcnt lgkmcnt(0)')
    e('s_mov_b64 exec, -1')
    e(f'v_readfirstlane_b32 s{st}, v{vt}')
    e('s_nop 0')
    e(f's_cmp_lg_u32 s{st}, {n-1}')
    e(f's_cbranch_scc1 {skip_label}')

L_TAG = 192
def master_get_tag(vt, va):
    L = uid('tag')
    lab(L)
    e(f'v_mov_b32 v{vt}, 0')
    e(f'buffer_load_dword v{vt}, v{vt}, s[{S_DBG}:{S_DBG+3}], 0 offen sc1')
    e('s_waitcnt vmcnt(0)')
    e(f'v_readfirstlane_b32 s{STAG}, v{vt}')
    spin_guard()
    e(f's_cmp_lg_u32 s{STAG}, 0')
    e(f's_cbranch_scc1 {L}_d')
    e('s_sleep 2')
    e(f's_branch {L}')
    lab(L + '_d')
    e(f'v_mov_b32 v{va}, {L_TAG}')
    e(f'ds_write_b32 v{va}, v{vt}')

def get_tag(vt):
    L = uid('tag')
    lab(L)
    e(f'v_mov_b32 v{vt}, {L_TAG}')
    e(f'ds_read_b32 v{vt}, v{vt}')
    e('s_waitcnt lgkmcnt(0)')
    e(f'v_readfirstlane_b32 s{STAG}, v{vt}')
    spin_guard()
    e(f's_cmp_lg_u32 s{STAG}, 0')
    e(f's_cbranch_scc1 {L}_d')
    e('s_sleep 1')
    e(f's_branch {L}')
    lab(L + '_d')

def set_flag(flg_off, idx_sgpr, vt):
    e(f's_lshl_b32 s33, s{idx_sgpr}, {FS}')
    e(f's_add_u32 s33, s33, {flg_off}')
    e(f'v_mov_b32 v{vt}, 0')
    e(f'v_mov_b32 v{vt+1}, s{STAG}')
    e('s_mov_b64 exec, 1')
    e(f'buffer_store_dword v{vt+1}, v{vt}, {WSR}, s33 offen sc1')
    e('s_mov_b64 exec, -1')

def poll_flags(soff_expr_emit, nflags, vaddr, vf):
    L = uid('poll')
    soff_expr_emit()
    per = (nflags + 63) // 64
    nl = min(nflags, 64)
    e(f'v_lshlrev_b32 v{vaddr}, {FS}, v2')
    if nl < 64: e(f's_mov_b64 exec, {hex((1 << nl) - 1)}')
    for j in range(1, per): e(f's_add_u32 s{50+j}, s34, {j*64*128}')
    lab(L)
    for j in range(per):
        e(f'buffer_load_dword v{vf+j}, v{vaddr}, {WSR}, s{34 if j == 0 else 50+j} offen sc1')
    e('s_waitcnt vmcnt(0)')
    e(f'v_cmp_ne_u32 vcc, s{STAG}, v{vf}')
    for j in range(1, per):
        e(f'v_cmp_ne_u32 s[36:37], s{STAG}, v{vf+j}')
        e('s_or_b64 vcc, vcc, s[36:37]')
    e(f's_cbranch_vccz {L}_d')
    spin_guard()
    e(f's_sleep {SLEEP}')
    e(f's_branch {L}')
    lab(L + '_d')
    e('s_mov_b64 exec, -1')

def tagged_loop(emit_loads, tag_regs, vmin, vmax, mask=None):
    L = uid('tl')
    lab(L)
    emit_loads()
    e('s_waitcnt vmcnt(0)')
    tr = list(tag_regs)
    e(f'v_mov_b32 v{vmin}, s{STAG}')
    e(f'v_mov_b32 v{vmax}, s{STAG}')
    while tr:
        if len(tr) >= 2:
            a, b = tr.pop(0), tr.pop(0)
            e(f'v_min3_u32 v{vmin}, v{vmin}, v{a}, v{b}')
            e(f'v_max3_u32 v{vmax}, v{vmax}, v{a}, v{b}')
        else:
            a = tr.pop(0)
            e(f'v_min_u32 v{vmin}, v{vmin}, v{a}')
            e(f'v_max_u32 v{vmax}, v{vmax}, v{a}')
    e(f'v_cmp_ne_u32 vcc, v{vmin}, v{vmax}')
    e(f's_cbranch_vccz {L}_d')
    spin_guard()
    e(f's_sleep {SLEEP}')
    e(f's_branch {L}')
    lab(L + '_d')

LF_Q, LF_U, LF_BP, LF_O0, LF_O1 = 0, 1, 2, 3, 4

out += ['.amdgcn_target "amdgcn-amd-amdhsa--gfx950"', '.text', f'.globl {NAME}', '.p2align 8', f'.type {NAME},@function']
lab(NAME)
e('s_cmp_ge_u32 s2, 256')
e('s_cbranch_scc1 L_exit')
TS()
e(f's_load_dwordx4 s[44:47], s[0:1], {KA["dbg"]}')
e(f's_load_dwordx2 s[48:49], s[0:1], {KA["A_x"]}')
e('v_lshrrev_b32 v1, 6, v0')
e('v_and_b32 v2, 63, v0')
e('v_readfirstlane_b32 s3, v1')
e('v_lshrrev_b32 v3, 4, v2')
e('v_and_b32 v4, 15, v2')
e(f's_mov_b32 s40, {f32hex(CSC)}')
e('s_mov_b32 s63, s3')
e('s_mov_b32 s62, 0')
e('s_cmp_ge_u32 s3, 8')
e('s_cbranch_scc1 L_C')

e(f's_load_dwordx4 s[52:55], s[0:1], {KA["A_k"]}')
e('s_waitcnt lgkmcnt(0)')
srd(S_WS, 46, WS_USED); srd(S_DBG, 44, 256)
srd(16, 52, 33554432); srd(20, 54, 33554432)
e('s_lshl_b32 s32, s2, 17')
e('s_lshl_b32 s33, s3, 14')
e('s_add_u32 s32, s32, s33')
e('v_lshlrev_b32 v5, 8, v3')
e('v_lshl_add_u32 v5, v4, 4, v5')
e('v_add_u32 v5, s32, v5')
e('s_mov_b32 s44, 0'); e('s_mov_b32 s45, 4096'); e('s_mov_b32 s46, 8192'); e('s_mov_b32 s47, 12288')
KB = 64
def kload(i, srdn):
    if NOA: return
    e(f'buffer_load_dwordx4 v[{KB+4*i}:{KB+4*i+3}], v5, s[{srdn}:{srdn+3}], s{44+i//4} offen offset:{(i%4)*1024} nt')
e('s_cmp_lg_u32 s3, 0')
e('s_cbranch_scc1 L_A_noinit')
e('v_lshlrev_b32 v6, 2, v2')
e('v_mov_b32 v7, 0')
e('ds_write_b32 v6, v7')
e('s_waitcnt lgkmcnt(0)')
lab('L_A_noinit')
e('s_barrier')
for i in range(16):
    if i >= KDEPTH: e(f's_waitcnt vmcnt({KDEPTH-1})')
    kload(i, 16)
TS()
get_tag(6)
lds_wait(LF_Q, 6, 7)
TS()
e(f'v_lshlrev_b32 v10, 4, v4')
e(f'ds_read_b128 v[48:51], v10 offset:{L_QA}')
e(f'ds_read_b128 v[52:55], v10 offset:{L_QA+256}')
for k in range(32): e(f'v_mov_b32 v{16+k}, 0')
e('s_waitcnt vmcnt(0) lgkmcnt(0)')
for i in range(16):
    for j in range(4):
        for hq in range(2):
            e(f'v_dot2c_f32_bf16 v{16+2*i+hq}, v{KB+4*i+j}, v{48+4*hq+j}')
for i in range(VDEPTH): kload(i, 20)
TS()
e('s_nop 3')
row_reduce([16+k for k in range(32)])
for hq in range(2):
    e(f'v_max_f32 v{56+hq}, v{16+hq}, v{18+hq}')
    for i in range(2, 16):
        e(f'v_max_f32 v{56+hq}, v{56+hq}, v{16+2*i+hq}')
xrow_reduce([56, 57], [58, 59], 'max')
for hq in range(2):
    e(f'v_mul_f32 v{56+hq}, s40, v{56+hq}')
for i in range(16):
    for hq in range(2):
        e(f'v_fma_f32 v{16+2*i+hq}, v{16+2*i+hq}, s40, -v{56+hq}')
for k in range(32): e(f'v_exp_f32 v{16+k}, v{16+k}')
e('s_nop 0')
for hq in range(2):
    e(f'v_add_f32 v{58+hq}, v{16+hq}, v{18+hq}')
    for i in range(2, 16):
        e(f'v_add_f32 v{58+hq}, v{58+hq}, v{16+2*i+hq}')
xrow_reduce([58, 59], [60, 61], 'add')
AC = 48
e('v_mov_b32 v10, v56'); e('v_mov_b32 v11, v58'); e('v_mov_b32 v12, v57'); e('v_mov_b32 v13, v59')
for k in range(16): e(f'v_mov_b32 v{AC+k}, 0')
for i in range(16):
    nissued = min(16, i + VDEPTH)
    e(f's_waitcnt vmcnt({nissued - i - 1})')
    for j in range(4):
        unpack(14, 15, KB+4*i+j)
        for hq in range(2):
            e(f'v_fmac_f32 v{AC+hq*8+2*j}, v{16+2*i+hq}, v14')
            e(f'v_fmac_f32 v{AC+hq*8+2*j+1}, v{16+2*i+hq}, v15')
    if i + VDEPTH < 16: kload(i + VDEPTH, 20)
TS()
xrow_reduce([AC+k for k in range(16)], [64+k for k in range(16)], 'add')
e('s_lshl_b32 s37, s3, 10')
e('v_lshlrev_b32 v7, 5, v4')
e('v_add_u32 v7, s37, v7')
e('s_lshl_b32 s37, s3, 4')
e('v_mov_b32 v6, s37')
e('s_mov_b64 exec, 0xffff')
e(f'ds_write_b128 v7, v[{AC}:{AC+3}] offset:{L_AO}')
e(f'ds_write_b128 v7, v[{AC+4}:{AC+7}] offset:{L_AO+16}')
e(f'ds_write_b128 v7, v[{AC+8}:{AC+11}] offset:{L_AO+512}')
e(f'ds_write_b128 v7, v[{AC+12}:{AC+15}] offset:{L_AO+528}')
e(f'ds_write_b128 v6, v[10:13] offset:{L_AML}')
e('s_mov_b64 exec, -1')
last_arriver(C_A, 8, 6, 7, 'L_A_done')
e('v_lshrrev_b32 v6, 5, v2')
e('v_lshlrev_b32 v7, 3, v6')
for s in range(8):
    e(f'ds_read_b64 v[{64+2*s}:{65+2*s}], v7 offset:{L_AML+s*16}')
e('v_lshlrev_b32 v9, 4, v2')
for s in range(8):
    e(f'ds_read_b128 v[{20+4*s}:{23+4*s}], v9 offset:{L_AO+s*1024}')
e('s_waitcnt lgkmcnt(0)')
e('v_max_f32 v12, v64, v66')
for s in range(2, 8): e(f'v_max_f32 v12, v12, v{64+2*s}')
for s in range(8): e(f'v_sub_f32 v{64+2*s}, v{64+2*s}, v12')
for s in range(8): e(f'v_exp_f32 v{64+2*s}, v{64+2*s}')
e('v_mov_b32 v13, 0')
for k in range(4): e(f'v_mov_b32 v{16+k}, 0')
for s in range(8):
    e(f'v_fmac_f32 v13, v{64+2*s}, v{65+2*s}')
    for k in range(4): e(f'v_fmac_f32 v{16+k}, v{64+2*s}, v{20+4*s+k}')
e(f'v_mov_b32 v24, v16'); e(f'v_mov_b32 v25, s{STAG}'); e('v_mov_b32 v26, v17'); e(f'v_mov_b32 v27, s{STAG}')
e(f'v_mov_b32 v28, v18'); e(f'v_mov_b32 v29, s{STAG}'); e('v_mov_b32 v30, v19'); e(f'v_mov_b32 v31, s{STAG}')
e('s_lshl_b32 s34, s2, 11')
e(f's_add_u32 s34, s34, {AP}')
e('v_lshlrev_b32 v9, 5, v2')
e(f'buffer_store_dwordx4 v[24:27], v9, {WSR}, s34 offen sc1')
e(f'buffer_store_dwordx4 v[28:31], v9, {WSR}, s34 offen offset:16 sc1')
e('v_mov_b32 v24, v12'); e('v_mov_b32 v26, v13')
e('s_lshl_b32 s34, s2, 5')
e(f's_add_u32 s34, s34, {AML}')
e('v_lshlrev_b32 v7, 4, v6')
e('v_and_b32 v6, 31, v2')
e('v_cmp_eq_u32 vcc, 0, v6')
e('s_and_saveexec_b64 s[36:37], vcc')
e(f'buffer_store_dwordx4 v[24:27], v7, {WSR}, s34 offen sc1')
e('s_mov_b64 exec, s[36:37]')
set_flag(FLG_AP, 2, 6)
lab('L_A_done')
TS()
ts_dump()
e('s_endpgm')
nA = ts_n[0]

lab('L_C')
ts_n[0] = 1
e('s_setprio 2')
e(f's_load_dwordx4 s[84:87], s[0:1], {KA["A_wq"]}')
e(f's_load_dwordx8 s[88:95], s[0:1], {KA["B_ckv"]}')
e(f's_load_dwordx4 s[96:99], s[0:1], {KA["B_wo"]}')
e(f's_load_dwordx2 s[100:101], s[0:1], {KA["out"]}')
assert not TSTAMP or True
e('s_sub_u32 s3, s3, 8')
e('s_waitcnt lgkmcnt(0)')
srd(S_WS, 46, WS_USED); srd(S_DBG, 44, 256); srd(S_X, 48, 2304)
e('s_lshr_b32 s32, s2, 7')
e('s_cmp_eq_u32 s32, 0')
e('s_cselect_b32 s50, s84, s90')
e('s_cselect_b32 s51, s85, s91')
srd(16, 50, 4718592)
srd(20, 92, 4194304)
srd(24, 88, 8388608)
e('s_or_b32 s32, s2, s3')
e('s_cmp_lg_u32 s32, 0')
e('s_cbranch_scc1 L_C_notag')
e('s_memrealtime s[60:61]')
e('s_waitcnt lgkmcnt(0)')
e('s_or_b32 s60, s60, 1')
e('v_mov_b32 v6, 0')
e('v_mov_b32 v7, s60')
e('s_mov_b64 exec, 1')
e(f'buffer_store_dword v7, v6, s[{S_DBG}:{S_DBG+3}], 0 offen sc1')
e('s_mov_b64 exec, -1')
lab('L_C_notag')
e('s_and_b32 s33, s2, 3')
e('s_mul_i32 s33, s33, 144')
e('s_mul_i32 s34, s3, 18')
e('s_add_u32 s33, s33, s34')
e('v_lshrrev_b32 v5, 5, v2')
e('v_add_u32 v5, s33, v5')
e('v_lshlrev_b32 v7, 1, v5')
e('s_bfe_u32 s35, s2, 0x50002')
e('s_lshl_b32 s35, s35, 8')
e('v_lshlrev_b32 v6, 13, v5')
e('v_and_b32 v8, 31, v2')
e('v_lshl_add_u32 v6, v8, 3, v6')
e('v_add_u32 v6, s35, v6')
e('s_mov_b32 s36, 0')
for i in range(9):
    e(f'buffer_load_dwordx2 v[{16+2*i}:{17+2*i}], v6, s[16:19], s36 offen nt')
    if i < 8: e('s_add_u32 s36, s36, 16384')
for i in range(9):
    for b in range(2):
        e(f'buffer_load_ushort v{40+2*i+b}, v7, s[{S_X}:{S_X+3}], 0 offen offset:{i*4+b*1152}')
e('s_lshr_b32 s42, s2, 3')
e('s_and_b32 s43, s2, 7')
e('s_lshl_b32 s33, s43, 6')
e('s_lshl_b32 s34, s3, 3')
e('s_add_u32 s33, s33, s34')
e('v_add_u32 v9, s33, v3')
e('v_lshlrev_b32 v10, 13, v9')
e('s_lshl_b32 s34, s42, 8')
e('v_lshl_add_u32 v10, v4, 4, v10')
e('v_add_u32 v10, s34, v10')
e('s_mov_b32 s36, 32768')
e('buffer_load_dwordx4 v[64:67], v10, s[20:23], 0 offen nt')
e('buffer_load_dwordx4 v[68:71], v10, s[20:23], s36 offen nt')
e('s_barrier')
e('s_cmp_lg_u32 s3, 0')
e('s_cbranch_scc1 L_C_nt')
master_get_tag(12, 13)
lab('L_C_nt')
e('s_waitcnt vmcnt(2)')
for k in range(18): e(f'v_lshlrev_b32 v{40+k}, 16, v{40+k}')
for k in range(8): e(f'v_mov_b32 v{72+k}, 0')
for i in range(9):
    for j in range(2):
        unpack(12, 13, 16+2*i+j)
        for b in range(2):
            e(f'v_fmac_f32 v{72+4*b+2*j}, v{40+2*i+b}, v12')
            e(f'v_fmac_f32 v{72+4*b+2*j+1}, v{40+2*i+b}, v13')
e('s_lshl_b32 s33, s3, 1')
e('v_lshrrev_b32 v12, 5, v2')
e('v_add_u32 v12, s33, v12')
e('v_lshlrev_b32 v12, 10, v12')
e('v_lshl_add_u32 v12, v8, 4, v12')
e(f'v_add_u32 v12, {L_RED}, v12')
e('ds_write_b128 v12, v[72:75]')
e('ds_write_b128 v12, v[76:79] offset:512')
TS()
get_tag(13)
last_arriver(C_Q, 8, 12, 13, 'L_C_qdone')
e('v_lshlrev_b32 v12, 4, v2')
e(f'v_add_u32 v13, {L_RED}, v12')
for q in range(2):
    for s in range(8):
        e(f'ds_read_b128 v[{16+4*s}:{19+4*s}], v13 offset:{(q*8+s)*1024}')
    e('s_waitcnt lgkmcnt(0)')
    if q == 0:
        for k in range(4): e(f'v_mov_b32 v{48+k}, v{16+k}')
        rng = range(1, 8)
    else: rng = range(8)
    for s in rng:
        for k in range(4): e(f'v_add_f32 v{48+k}, v{48+k}, v{16+4*s+k}')
def store4tagged(src, vaddr, soff, tmp):
    e(f'v_mov_b32 v{tmp}, v{src}'); e(f'v_mov_b32 v{tmp+1}, s{STAG}'); e(f'v_mov_b32 v{tmp+2}, v{src+1}'); e(f'v_mov_b32 v{tmp+3}, s{STAG}')
    e(f'v_mov_b32 v{tmp+4}, v{src+2}'); e(f'v_mov_b32 v{tmp+5}, s{STAG}'); e(f'v_mov_b32 v{tmp+6}, v{src+3}'); e(f'v_mov_b32 v{tmp+7}, s{STAG}')
    e(f'buffer_store_dwordx4 v[{tmp}:{tmp+3}], v{vaddr}, {WSR}, s{soff} offen sc1')
    e(f'buffer_store_dwordx4 v[{tmp+4}:{tmp+7}], v{vaddr}, {WSR}, s{soff} offen offset:16 sc1')
e('s_lshl_b32 s34, s2, 11')
e(f's_add_u32 s34, s34, {QP}')
e('v_lshlrev_b32 v12, 5, v2')
store4tagged(48, 12, 34, 16)
set_flag(FLG_Q, 2, 12)
lab('L_C_qdone')
e('s_cmp_ge_u32 s2, 128')
e('s_cbranch_scc1 L_C_nockv')
e('s_lshl_b32 s33, s2, 16')
e('s_lshl_b32 s34, s3, 13')
e('s_add_u32 s33, s33, s34')
e('v_lshlrev_b32 v11, 4, v2')
e('s_mul_i32 s34, s3, %d' % (8*RS))
e(f's_add_u32 s34, s34, {L_CKV}')
e('s_cmp_eq_u32 s3, 0')
e('s_cbranch_scc1 L_C_nockv')
for i in range(8):
    e('s_mov_b32 m0, s34')
    e('s_nop 0')
    e('buffer_load_dwordx4 v11, s[24:27], s33 offen nt lds')
    if i < 7:
        e('s_add_u32 s33, s33, 1024'); e(f's_add_u32 s34, s34, {RS}')
lab('L_C_nockv')
e('s_cmp_lg_u32 s3, 0')
e('s_cbranch_scc1 L_C_w1')
def em():
    e('s_bfe_u32 s35, s2, 0x40003')
    e('s_lshl_b32 s34, s35, 10')
    e(f's_add_u32 s34, s34, {FLG_Q}')
poll_flags(em, 8, 12, 16)
def em():
    e('s_add_u32 s34, s42, 32')
    e('s_lshl_b32 s34, s34, 9')
    e(f's_add_u32 s34, s34, {FLG_Q}')
poll_flags(em, 4, 12, 16)
e('s_bfe_u32 s35, s2, 0x40003')
e('s_lshr_b32 s36, s2, 7')
e('s_lshl_b32 s34, s35, 14')
e('s_lshl_b32 s37, s36, 10')
e('s_add_u32 s34, s34, s37')
e(f's_add_u32 s34, s34, {QP}')
e('v_lshrrev_b32 v12, 5, v2')
e('v_lshlrev_b32 v12, 13, v12')
e('v_and_b32 v13, 31, v2')
e('v_lshl_add_u32 v12, v13, 5, v12')
e('s_add_u32 s35, s42, 32')
e('s_lshl_b32 s35, s35, 13')
e(f's_add_u32 s35, s35, {QP}')
e('v_lshlrev_b32 v15, 5, v2')
e('s_add_u32 s36, s34, 4096')
e('s_add_u32 s37, s35, 4096')
def loads():
    for kq in range(4):
        for hf in range(2):
            r = 16 + (kq*2+hf)*4
            e(f'buffer_load_dwordx4 v[{r}:{r+3}], v12, {WSR}, s{34 if kq<2 else 36} offen offset:{(kq%2)*2048+hf*16} sc1')
    for kq in range(4):
        for hf in range(2):
            r = 72 + (kq*2+hf)*4
            e(f'buffer_load_dwordx4 v[{r}:{r+3}], v15, {WSR}, s{35 if kq<2 else 37} offen offset:{(kq%2)*2048+hf*16} sc1')
tagged_loop(loads, [16+4*k+1 for k in range(8)] + [16+4*k+3 for k in range(8)] + [72+4*k+1 for k in range(8)] + [72+4*k+3 for k in range(8)], 48, 49)
for base, dst in ((16, 48), (72, 52)):
    for hf in range(2):
        for p in range(2):
            d = dst + hf*2 + p
            e(f'v_add_f32 v{d}, v{base+(0*2+hf)*4+2*p}, v{base+(1*2+hf)*4+2*p}')
            e(f'v_add_f32 v{d}, v{d}, v{base+(2*2+hf)*4+2*p}')
            e(f'v_add_f32 v{d}, v{d}, v{base+(3*2+hf)*4+2*p}')
e('v_cvt_pk_bf16_f32 v32, v48, v49')
e('v_cvt_pk_bf16_f32 v33, v50, v51')
e('v_lshlrev_b32 v12, 3, v2')
e(f'ds_write_b64 v12, v[32:33] offset:{L_QA}')
e('v_cvt_pk_bf16_f32 v20, v52, v53')
e('v_cvt_pk_bf16_f32 v21, v54, v55')
unpack(16, 17, 20); unpack(18, 19, 21)
e('v_lshlrev_b32 v12, 4, v2')
e(f'ds_write_b128 v12, v[16:19] offset:{L_QB}')
lds_set(LF_Q, 12, 13)
e('s_cmp_ge_u32 s2, 128')
e('s_cbranch_scc1 L_C_w1')
e('s_lshl_b32 s33, s2, 16')
e(f's_mov_b32 s34, {L_CKV}')
for i in range(8):
    e('s_mov_b32 m0, s34')
    e('s_nop 0')
    e('buffer_load_dwordx4 v11, s[24:27], s33 offen nt lds')
    if i < 7:
        e('s_add_u32 s33, s33, 1024'); e(f's_add_u32 s34, s34, {RS}')
lab('L_C_w1')
lds_wait(LF_Q, 12, 13)
TS()
e('v_lshlrev_b32 v13, 5, v4')
e(f'ds_read_b128 v[32:35], v13 offset:{L_QB}')
e(f'ds_read_b128 v[36:39], v13 offset:{L_QB+16}')
e(f'ds_read_b128 v[40:43], v13 offset:{L_QB+512}')
e(f'ds_read_b128 v[44:47], v13 offset:{L_QB+528}')
for k in range(4): e(f'v_mov_b32 v{48+k}, 0')
e('s_waitcnt lgkmcnt(0)')
for i in range(2):
    for j in range(4):
        unpack(12, 13, 64+4*i+j)
        for b in range(2):
            e(f'v_fmac_f32 v{48+2*i+b}, v{32+8*b+2*j}, v12')
            e(f'v_fmac_f32 v{48+2*i+b}, v{32+8*b+2*j+1}, v13')
e('s_nop 1')
row_reduce([48, 49, 50, 51])
e('v_cmp_eq_u32 vcc, 1, v4'); e('s_nop 1'); e('v_cndmask_b32 v48, v48, v49, vcc')
e('v_cmp_eq_u32 vcc, 2, v4'); e('s_nop 1'); e('v_cndmask_b32 v48, v48, v50, vcc')
e('v_cmp_eq_u32 vcc, 3, v4'); e('s_nop 1'); e('v_cndmask_b32 v48, v48, v51, vcc')
e('v_cvt_pk_bf16_f32 v48, v48, v48')
e('v_and_b32 v12, 1, v4')
e('v_lshlrev_b32 v12, 7, v12')
e('v_lshrrev_b32 v13, 1, v4')
e('v_lshl_add_u32 v13, v13, 2, v3')
e('s_lshl_b32 s34, s3, 3')
e('v_add_u32 v13, s34, v13')
e('v_lshl_add_u32 v12, v13, 1, v12')
e('s_mov_b32 exec_lo, 0x000f000f'); e('s_mov_b32 exec_hi, 0x000f000f')
e(f'ds_write_b16 v12, v48 offset:{L_UO}')
e('s_mov_b64 exec, -1')
srd(20, 94, 4194304)
e('s_mov_b32 s36, 32768')
e('buffer_load_dwordx4 v[64:67], v10, s[20:23], 0 offen nt')
e('buffer_load_dwordx4 v[68:71], v10, s[20:23], s36 offen nt')
last_arriver(C_U, 8, 12, 13, 'L_C_udone')
e('v_lshlrev_b32 v12, 3, v2')
e(f'ds_read_b64 v[16:17], v12 offset:{L_UO}')
e('v_lshrrev_b32 v13, 4, v2')
e('v_lshlrev_b32 v13, 16, v13')
e('v_lshl_add_u32 v12, v4, 4, v13')
e('s_lshl_b32 s34, s42, 11')
e('s_lshl_b32 s35, s43, 8')
e('s_add_u32 s34, s34, s35')
e(f's_add_u32 s34, s34, {QABS}')
e('s_waitcnt lgkmcnt(0)')
e('v_mov_b32 v18, v17'); e(f'v_mov_b32 v17, s{STAG}'); e(f'v_mov_b32 v19, s{STAG}')
e('s_mov_b32 exec_lo, -1'); e('s_mov_b32 exec_hi, 0')
e(f'buffer_store_dwordx4 v[16:19], v12, {WSR}, s34 offen sc1')
e('s_mov_b64 exec, -1')
set_flag(FLG_U, 2, 12)
lab('L_C_udone')
TS()
e('s_cmp_ge_u32 s2, 128')
e('s_cbranch_scc1 L_C_noB')
e('s_cmp_lg_u32 s3, 0')
e('s_cbranch_scc1 L_C_w2')
def em():
    e(f's_mov_b32 s34, {FLG_U}')
poll_flags(em, 256, 12, 16)
lds_set(LF_U, 12, 13)
lab('L_C_w2')
lds_wait(LF_U, 12, 13)
e('s_lshr_b32 s33, s2, 6')
e('s_lshl_b32 s34, s33, 16')
e('s_lshl_b32 s35, s3, 13')
e('s_add_u32 s34, s34, s35')
e(f's_add_u32 s34, s34, {QABS}')
e('s_add_u32 s35, s34, 4096')
e('v_lshlrev_b32 v12, 4, v2')
def loads():
    for k in range(8):
        e(f'buffer_load_dwordx4 v[{16+4*k}:{19+4*k}], v12, {WSR}, s{34 if k<4 else 35} offen offset:{(k%4)*1024} sc1')
tagged_loop(loads, [16+4*k+1 for k in range(8)] + [16+4*k+3 for k in range(8)], 48, 49)
e(f's_mul_i32 s35, s3, {4*QS}')
e(f's_add_u32 s35, s35, {L_QABS}')
e('v_lshlrev_b32 v13, 3, v2')
e('v_add_u32 v13, s35, v13')
for k in range(8):
    e(f'v_mov_b32 v{16+4*k+1}, v{16+4*k+2}')
for k in range(8):
    e(f'ds_write_b64 v13, v[{16+4*k}:{17+4*k}] offset:{(k//2)*QS+(k%2)*512}')
cbar(0, 12, 13)
e('s_lshr_b32 s35, s3, 2')
e('s_and_b32 s36, s3, 3')
e('s_lshl_b32 s37, s36, 4')
e('v_add_u32 v12, s37, v4')
e(f'v_mul_u32_u24 v12, {RS}, v12')
e('v_lshl_add_u32 v12, v3, 4, v12')
e(f'v_add_u32 v12, {L_CKV}, v12')
e('s_lshl_b32 s37, s35, 4')
e('v_add_u32 v13, s37, v4')
e(f'v_mul_u32_u24 v13, {QS}, v13')
e('v_lshl_add_u32 v13, v3, 4, v13')
e(f'v_add_u32 v13, {L_QABS}, v13')
for k in range(4): e(f'v_mov_b32 v{24+k}, 0')
for half in range(2):
    for q in range(8):
        ks = half*8+q
        e(f'ds_read_b128 v[{28+4*q}:{31+4*q}], v12 offset:{ks*64}')
        e(f'ds_read_b128 v[{72+4*q}:{75+4*q}], v13 offset:{ks*64}')
    e('s_waitcnt lgkmcnt(0)')
    for q in range(8):
        e(f'v_mfma_f32_16x16x32_bf16 v[24:27], v[{28+4*q}:{31+4*q}], v[{72+4*q}:{75+4*q}], v[24:27]')
    e('s_nop 3')
e('s_nop 8')
e('s_lshl_b32 s37, s35, 12')
e('s_lshl_b32 s34, s36, 6')
e('s_add_u32 s37, s37, s34')
e('v_lshlrev_b32 v12, 8, v4')
e('v_lshl_add_u32 v12, v3, 4, v12')
e('v_add_u32 v12, s37, v12')
e(f'v_add_u32 v12, {L_S}, v12')
e('ds_write_b128 v12, v[24:27]')
cbar(1, 12, 13)
e('s_lshl_b32 s37, s3, 2')
e('v_add_u32 v12, s37, v3')
e('v_lshlrev_b32 v13, 8, v12')
e('v_lshl_add_u32 v13, v4, 4, v13')
e(f'v_add_u32 v13, {L_S}, v13')
e('ds_read_b128 v[16:19], v13')
e('s_waitcnt lgkmcnt(0)')
e('v_max_f32 v20, v16, v17')
e('v_max3_f32 v20, v20, v18, v19')
e('s_nop 1')
row_reduce([20], 'max')
e('v_mul_f32 v20, s40, v20')
for k in range(4): e(f'v_fma_f32 v{16+k}, v{16+k}, s40, -v20')
for k in range(4): e(f'v_exp_f32 v{16+k}, v{16+k}')
e('s_nop 0')
e('v_add_f32 v21, v16, v17')
e('v_add_f32 v22, v18, v19')
e('v_add_f32 v21, v21, v22')
e('v_cvt_pk_bf16_f32 v22, v16, v17')
e('v_cvt_pk_bf16_f32 v23, v18, v19')
row_reduce([21], 'add')
e('v_mul_u32_u24 v13, 144, v12')
e('v_lshl_add_u32 v13, v4, 3, v13')
e(f'v_add_u32 v13, {L_P}, v13')
e('ds_write_b64 v13, v[22:23]')
e('v_mov_b32 v24, v20'); e(f'v_mov_b32 v25, s{STAG}'); e('v_mov_b32 v26, v21'); e(f'v_mov_b32 v27, s{STAG}')
e('v_lshlrev_b32 v13, 4, v12')
e('s_lshl_b32 s34, s2, 9')
e(f's_add_u32 s34, s34, {BML}')
e('s_mov_b32 exec_lo, 0x00010001'); e('s_mov_b32 exec_hi, 0x00010001')
e(f'buffer_store_dwordx4 v[24:27], v13, {WSR}, s34 offen sc1')
e('s_mov_b64 exec, -1')
cbar(2, 12, 13)
e('v_mul_u32_u24 v12, 144, v4')
e('v_lshl_add_u32 v12, v3, 4, v12')
e(f'v_add_u32 v12, {L_P}, v12')
for hh in range(2):
    for ks in range(2):
        r = 16 + (hh*2+ks)*4
        e(f'ds_read_b128 v[{r}:{r+3}], v12 offset:{hh*16*144+ks*64}')
e('v_lshrrev_b32 v13, 2, v4')
e('v_lshl_add_u32 v13, v3, 3, v13')
e(f'v_mul_u32_u24 v13, {RS}, v13')
e('v_and_b32 v12, 3, v4')
e('v_lshl_add_u32 v13, v12, 3, v13')
e('s_lshl_b32 s37, s3, 7')
e(f's_add_u32 s37, s37, {L_CKV}')
e('v_add_u32 v13, s37, v13')
for ct in range(4):
    for ks in range(2):
        for t in range(2):
            r = 32 + ((ct*2+ks)*2+t)*2
            e(f'ds_read_b64_tr_b16 v[{r}:{r+1}], v13 offset:{(ks*32+t*4)*RS + ct*32}')
for k in range(32): e(f'v_mov_b32 v{72+k}, 0')
e('s_waitcnt lgkmcnt(0)')
for ct in range(4):
    for hh in range(2):
        for ks in range(2):
            a = 32 + (ct*2+ks)*4
            bq = 16 + (hh*2+ks)*4
            d = 72 + (ct*2+hh)*4
            e(f'v_mfma_f32_16x16x32_bf16 v[{d}:{d+3}], v[{a}:{a+3}], v[{bq}:{bq+3}], v[{d}:{d+3}]')
e('s_nop 15')
TS()
for k in range(8):
    d = 72 + 4*k
    e(f'v_cvt_pk_bf16_f32 v{d}, v{d}, v{d+1}')
    e(f'v_cvt_pk_bf16_f32 v{d+2}, v{d+2}, v{d+3}')
    e(f'v_mov_b32 v{d+1}, s{STAG}')
    e(f'v_mov_b32 v{d+3}, s{STAG}')
e('s_lshl_b32 s37, s3, 13')
e(f's_add_u32 s37, s37, {L_BPS}')
e('v_lshlrev_b32 v12, 8, v4')
e('v_lshl_add_u32 v12, v3, 4, v12')
e('v_add_u32 v12, s37, v12')
for ct in range(4):
    for hh in range(2):
        d = 72 + (ct*2+hh)*4
        e(f'ds_write_b128 v12, v[{d}:{d+3}] offset:{hh*4096+ct*64}')
e('v_lshlrev_b32 v13, 4, v2')
e('v_add_u32 v13, s37, v13')
e('s_waitcnt lgkmcnt(0)')
for k in range(8):
    e(f'ds_read_b128 v[{16+4*k}:{19+4*k}], v13 offset:{k*1024}')
e('s_lshl_b32 s34, s2, 16')
e('s_lshl_b32 s37, s3, 8')
e('s_add_u32 s34, s34, s37')
e(f's_add_u32 s34, s34, {BP}')
e('v_lshlrev_b32 v12, 11, v3')
e('v_lshl_add_u32 v12, v4, 4, v12')
e('s_waitcnt lgkmcnt(0)')
for k in range(8):
    e(f'buffer_store_dwordx4 v[{16+4*k}:{19+4*k}], v12, {WSR}, s34 offen sc1')
    if k < 7: e('s_add_u32 s34, s34, 8192')
e('v_mov_b32 v12, %d' % (C_BAR + 4*6)); e('v_mov_b32 v13, 1')
e('s_mov_b64 exec, 1'); e('ds_add_u32 v12, v13'); e('s_mov_b64 exec, -1')
last_arriver(C_BP, 8, 12, 13, 'L_C_bdone')
set_flag(FLG_BP, 2, 12)
lab('L_C_bdone')
TS()
lab('L_C_noB')
def task_decode(st):
    e(f's_cmp_ge_u32 s{st}, 144')
    e('s_cselect_b32 s58, 1, 0')
    e('s_mul_i32 s59, s58, 144')
    e(f's_sub_u32 s59, s{st}, s59')
    e('s_and_b32 s60, s59, 15')
    e('s_lshr_b32 s59, s59, 4')
def o_prefetch(st, reg):
    task_decode(st)
    e('s_cmp_eq_u32 s58, 0')
    e('s_cselect_b32 s54, s86, s96')
    e('s_cselect_b32 s55, s87, s97')
    srd(24, 54, 4718592)
    e('s_lshl_b32 s33, s60, 8')
    e('s_lshl_b32 s34, s3, 5')
    e('s_add_u32 s33, s33, s34')
    e('v_lshrrev_b32 v12, 3, v2')
    e('v_add_u32 v12, s33, v12')
    e('s_movk_i32 s34, 1152')
    e('v_mul_lo_u32 v12, v12, s34')
    e('v_and_b32 v13, 7, v2')
    e('v_lshl_add_u32 v12, v13, 4, v12')
    e('s_lshl_b32 s34, s59, 7')
    for i in range(4):
        e(f'buffer_load_dwordx4 v[{reg+4*i}:{reg+4*i+3}], v12, s[24:27], s34 offen nt')
        if i < 3: e(f's_add_u32 s34, s34, {8*1152}')
o_prefetch(2, 96)
e('s_sub_u32 s61, s2, 128')
e('s_cmp_lt_u32 s61, 32')
e('s_cbranch_scc0 L_C_not2')
e('s_add_u32 s61, s61, 256')
o_prefetch(61, 112)
lab('L_C_not2')
e('s_cmp_lg_u32 s3, 0')
e('s_cbranch_scc1 L_C_w3')
def em():
    e(f's_mov_b32 s34, {FLG_BP}')
poll_flags(em, 128, 12, 16)
lds_set(LF_BP, 12, 13)
lab('L_C_w3')
lds_wait(LF_BP, 12, 13)
e('s_lshr_b32 s33, s3, 2')
e('s_and_b32 s35, s3, 3')
e('s_lshl_b32 s34, s33, 6')
e('v_add_u32 v12, s34, v2')
e('v_lshlrev_b32 v12, 5, v12')
e('v_add_u32 v12, s42, v12')
e('v_lshlrev_b32 v12, 4, v12')
e('s_lshl_b32 s34, s35, 4')
e('v_add_u32 v15, s34, v3')
e('s_lshl_b32 s34, s33, 6')
e('v_add_u32 v13, s34, v15')
e('v_lshlrev_b32 v13, 5, v13')
e('v_add_u32 v13, s42, v13')
e('v_lshlrev_b32 v13, 11, v13')
e('v_lshl_add_u32 v13, v4, 4, v13')
e('s_lshl_b32 s34, s43, 8')
e(f's_add_u32 s34, s34, {BP}')
e(f's_mov_b32 s35, {BML}')
e(f's_add_u32 s36, s34, {4*32*2048}')
e(f's_add_u32 s37, s36, {4*32*2048}')
e(f's_add_u32 s38, s37, {4*32*2048}')
def loads():
    e(f'buffer_load_dwordx4 v[40:43], v12, {WSR}, s35 offen sc1')
    for i in range(4):
        e(f'buffer_load_dwordx4 v[{16+4*i}:{19+4*i}], v13, {WSR}, s{[34,36,37,38][i]} offen sc1')
tagged_loop(loads, [41, 43] + [16+4*k+1 for k in range(4)] + [16+4*k+3 for k in range(4)], 48, 49)
TS()
e('v_mov_b32 v44, v40')
e('s_nop 1')
row_reduce([44], 'max')
xrow_reduce([44], [45], 'max')
e('v_sub_f32 v40, v40, v44')
e('v_exp_f32 v40, v40')
e('s_nop 0')
e('v_mul_f32 v44, v40, v42')
e('s_nop 1')
row_reduce([44], 'add')
xrow_reduce([44], [45], 'add')
e('v_rcp_f32 v44, v44')
e('s_nop 0')
e('v_mul_f32 v40, v40, v44')
for i in range(4):
    e(f'v_add_u32 v45, {4*i}, v15')
    e('v_lshlrev_b32 v45, 2, v45')
    e(f'ds_bpermute_b32 v{48+i}, v45, v40')
e('s_waitcnt lgkmcnt(0)')
for k in range(4): e(f'v_mov_b32 v{52+k}, 0')
for i in range(4):
    for p in range(2):
        unpack(12, 13, 16+4*i+2*p)
        e(f'v_fmac_f32 v{52+2*p}, v{48+i}, v12')
        e(f'v_fmac_f32 v{53+2*p}, v{48+i}, v13')
xrow_reduce([52, 53, 54, 55], [56, 57, 58, 59], 'add')
VR = L_CKV
e('s_cmp_ge_u32 s2, 128')
e('s_cbranch_scc1 L_C_vr')
Lq = uid('ckw')
e('v_mov_b32 v12, %d' % (C_BAR + 4*6))
lab(Lq)
e('ds_read_b32 v13, v12'); e('s_waitcnt lgkmcnt(0)'); e('v_readfirstlane_b32 s32, v13'); e('s_nop 0')
e('s_cmp_ge_u32 s32, 8'); e(f's_cbranch_scc1 L_C_vr'); spin_guard(); e(f's_branch {Lq}')
lab('L_C_vr')
e('s_lshl_b32 s34, s3, 8')
e(f's_add_u32 s34, s34, {VR}')
e('v_lshlrev_b32 v12, 4, v4')
e('v_add_u32 v12, s34, v12')
e('ds_write_b128 v12, v[52:55]')
cbar(3, 12, 13)
e('s_lshl_b32 s34, s3, 3')
e('v_add_u32 v12, s34, v3')
e('v_lshlrev_b32 v12, 2, v12')
e(f'v_add_u32 v12, {VR}, v12')
for i in range(2):
    for b in range(2):
        for q in range(4):
            e(f'ds_read_b32 v{16+(i*2+b)*4+q}, v12 offset:{(b*4+q)*256+i*16}')
e('s_waitcnt lgkmcnt(0)')
for ib in range(4):
    for q in range(1, 4): e(f'v_add_f32 v{16+ib*4}, v{16+ib*4}, v{16+ib*4+q}')
for k in range(16): e(f'v_mov_b32 v{32+k}, 0')
for i in range(2):
    for j in range(4):
        unpack(12, 13, 64+4*i+j)
        for b in range(2):
            e(f'v_fmac_f32 v{32+8*b+2*j}, v{16+(i*2+b)*4}, v12')
            e(f'v_fmac_f32 v{32+8*b+2*j+1}, v{16+(i*2+b)*4}, v13')
xrow_reduce([32+k for k in range(16)], [48+k for k in range(16)], 'add')
e('s_lshl_b32 s34, s3, 10')
e(f's_add_u32 s34, s34, {VR+4096}')
e('v_lshlrev_b32 v12, 5, v4')
e('v_add_u32 v12, s34, v12')
e('s_mov_b64 exec, 0xffff')
e('ds_write_b128 v12, v[32:35]')
e('ds_write_b128 v12, v[36:39] offset:16')
e('ds_write_b128 v12, v[40:43] offset:512')
e('ds_write_b128 v12, v[44:47] offset:528')
e('s_mov_b64 exec, -1')
last_arriver(C_V, 8, 12, 13, 'L_C_vdone')
e('v_lshlrev_b32 v12, 4, v2')
e(f'v_add_u32 v13, {VR+4096}, v12')
for s in range(8): e(f'ds_read_b128 v[{16+4*s}:{19+4*s}], v13 offset:{s*1024}')
e('s_waitcnt lgkmcnt(0)')
for s in range(1, 8):
    for k in range(4): e(f'v_add_f32 v{16+k}, v{16+k}, v{16+4*s+k}')
e('s_lshl_b32 s34, s2, 11')
e(f's_add_u32 s34, s34, {CTXP}')
e('v_lshlrev_b32 v12, 5, v2')
store4tagged(16, 12, 34, 48)
set_flag(FLG_V, 2, 12)
lab('L_C_vdone')
TS()
def o_stage(st, reg, cnt, bark, LOV, LRD, lf):
    task_decode(st)
    Lb, Lj, Ld = uid('ob'), uid('oj'), uid('od')
    Lw, Lw2, Lp = uid('ow'), uid('ow2'), uid('op')
    e('s_cmp_lg_u32 s3, 0')
    e(f's_cbranch_scc1 {Lw}')
    e('s_cmp_eq_u32 s58, 0')
    e(f's_cbranch_scc0 {Lp}')
    for b in range(2):
        def em():
            e(f's_add_u32 s34, s60, {b*16}')
            e('s_lshl_b32 s34, s34, 10')
            e(f's_add_u32 s34, s34, {FLG_AP}')
        poll_flags(em, 8, 12, 16)
    e(f's_branch {Lw2}')
    lab(Lp)
    def em():
        e('s_lshl_b32 s34, s60, 11')
        e(f's_add_u32 s34, s34, {FLG_V}')
    poll_flags(em, 16, 12, 16)
    lab(Lw2)
    lds_set(lf, 12, 13)
    lab(Lw)
    lds_wait(lf, 12, 13)
    e('s_cmp_eq_u32 s58, 0')
    e(f's_cbranch_scc0 {Lb}')
    e('s_lshr_b32 s33, s3, 2')
    e('s_and_b32 s35, s3, 3')
    e('s_lshl_b32 s34, s33, 4')
    e('s_add_u32 s34, s34, s60')
    e('s_lshl_b32 s36, s34, 14')
    e('s_lshl_b32 s37, s35, 9')
    e('s_add_u32 s36, s36, s37')
    e(f's_add_u32 s36, s36, {AP}')
    e('v_lshlrev_b32 v12, 3, v2')
    e('s_add_u32 s37, s36, 4096'); e('s_add_u32 s38, s36, 8192'); e('s_add_u32 s32, s36, 12288')
    e('s_lshl_b32 s34, s34, 8')
    e('s_lshr_b32 s33, s35, 1')
    e('s_lshl_b32 s33, s33, 4')
    e('s_add_u32 s34, s34, s33')
    e(f's_add_u32 s34, s34, {AML}')
    e('v_mov_b32 v13, 0')
    def loads():
        for c in range(8):
            e(f'buffer_load_dwordx2 v[{16+2*c}:{17+2*c}], v12, {WSR}, s{[36,37,38,32][c//2]} offen offset:{(c%2)*2048} sc1')
        for c in range(8):
            e(f'buffer_load_dwordx4 v[{64+4*c - 32 if False else 32+4*c}:{35+4*c}], v13, {WSR}, s34 offen offset:{c*32} sc1')
    tagged_loop(loads, [17+2*c for c in range(8)] + [33+4*c for c in range(8)] + [35+4*c for c in range(8)], 14, 15)
    e('v_max_f32 v13, v32, v36')
    for c in range(2, 8): e(f'v_max_f32 v13, v13, v{32+4*c}')
    for c in range(8): e(f'v_sub_f32 v{32+4*c}, v{32+4*c}, v13')
    for c in range(8): e(f'v_exp_f32 v{32+4*c}, v{32+4*c}')
    e('v_mov_b32 v14, 0'); e('v_mov_b32 v15, 0')
    for c in range(8):
        e(f'v_fmac_f32 v14, v{32+4*c}, v{34+4*c}')
        e(f'v_fmac_f32 v15, v{32+4*c}, v{16+2*c}')
    e('v_rcp_f32 v14, v14')
    e('s_nop 0')
    e('v_mul_f32 v15, v15, v14')
    e(f's_branch {Lj}')
    lab(Lb)
    e('s_lshr_b32 s33, s3, 2')
    e('s_and_b32 s35, s3, 3')
    e('s_lshr_b32 s37, s35, 1')
    e('s_lshl_b32 s34, s60, 1')
    e('s_add_u32 s34, s34, s37')
    e('s_lshl_b32 s36, s34, 14')
    e('s_lshl_b32 s37, s33, 10')
    e('s_add_u32 s36, s36, s37')
    e('s_and_b32 s37, s35, 1')
    e('s_lshl_b32 s37, s37, 9')
    e('s_add_u32 s36, s36, s37')
    e(f's_add_u32 s36, s36, {CTXP}')
    e('v_lshlrev_b32 v12, 3, v2')
    e('s_add_u32 s37, s36, 4096'); e('s_add_u32 s38, s36, 8192'); e('s_add_u32 s32, s36, 12288')
    def loads():
        for c in range(8):
            e(f'buffer_load_dwordx2 v[{16+2*c}:{17+2*c}], v12, {WSR}, s{[36,37,38,32][c//2]} offen offset:{(c%2)*2048} sc1')
    tagged_loop(loads, [17+2*c for c in range(8)], 14, 15)
    e('v_mov_b32 v15, v16')
    for c in range(1, 8): e(f'v_add_f32 v15, v15, v{16+2*c}')
    lab(Lj)
    e('v_cvt_pk_bf16_f32 v15, v15, v15')
    e('v_lshlrev_b32 v15, 16, v15')
    e('s_lshl_b32 s34, s3, 8')
    e(f's_add_u32 s34, s34, {LOV}')
    e('v_lshlrev_b32 v12, 2, v2')
    e('v_add_u32 v12, s34, v12')
    e('ds_write_b32 v12, v15')
    cbar(bark, 12, 13)
    e('s_lshl_b32 s34, s3, 5')
    e('v_lshrrev_b32 v12, 3, v2')
    e('v_add_u32 v12, s34, v12')
    e('v_lshlrev_b32 v12, 2, v12')
    e(f'v_add_u32 v12, {LOV}, v12')
    for i in range(4):
        for b in range(2):
            e(f'ds_read_b32 v{16+2*i+b}, v12 offset:{b*1024+i*32}')
    for k in range(16): e(f'v_mov_b32 v{32+k}, 0')
    e('s_waitcnt vmcnt(0) lgkmcnt(0)')
    for i in range(4):
        for j in range(4):
            unpack(12, 13, reg+4*i+j)
            for b in range(2):
                e(f'v_fmac_f32 v{32+8*b+2*j}, v{16+2*i+b}, v12')
                e(f'v_fmac_f32 v{32+8*b+2*j+1}, v{16+2*i+b}, v13')
    for k in range(16): e(f'v_add_f32_dpp v{32+k}, v{32+k}, v{32+k} row_ror:8 row_mask:0xf bank_mask:0xf')
    xrow_reduce([32+k for k in range(16)], [48+k for k in range(16)], 'add')
    e('s_lshl_b32 s34, s3, 9')
    e(f's_add_u32 s34, s34, {LRD}')
    e('v_lshlrev_b32 v12, 5, v2')
    e('v_add_u32 v12, s34, v12')
    e('s_mov_b64 exec, 0xff')
    e('ds_write_b128 v12, v[32:35]')
    e('ds_write_b128 v12, v[36:39] offset:16')
    e('ds_write_b128 v12, v[40:43] offset:256')
    e('ds_write_b128 v12, v[44:47] offset:272')
    e('s_mov_b64 exec, -1')
    last_arriver(cnt, 8, 12, 13, Ld)
    e('v_lshlrev_b32 v12, 3, v2')
    e(f'v_add_u32 v13, {LRD}, v12')
    for s in range(8): e(f'ds_read_b64 v[{16+2*s}:{17+2*s}], v13 offset:{s*512}')
    e('s_waitcnt lgkmcnt(0)')
    for s in range(1, 8):
        e(f'v_add_f32 v16, v16, v{16+2*s}'); e(f'v_add_f32 v17, v17, v{17+2*s}')
    e('v_mov_b32 v18, v17'); e(f'v_mov_b32 v17, s{STAG}'); e(f'v_mov_b32 v19, s{STAG}')
    e(f's_lshl_b32 s34, s{st}, 10')
    e(f's_add_u32 s34, s34, {OUTP}')
    e('v_lshlrev_b32 v12, 4, v2')
    e(f'buffer_store_dwordx4 v[16:19], v12, {WSR}, s34 offen sc1')
    set_flag(FLG_O, st, 12)
    lab(Ld)
OSC = L_CKV + 16384
o_stage(2, 96, C_O, 4, L_OV, OSC, LF_O0)
TS()
e('s_sub_u32 s61, s2, 128')
e('s_cmp_lt_u32 s61, 32')
e('s_cbranch_scc0 L_C_not2b')
e('s_add_u32 s61, s61, 256')
o_stage(61, 112, C_O2, 5, L_OV+2048, OSC+4096, LF_O1)
lab('L_C_not2b')
e('s_sub_u32 s61, s2, 240')
e('s_cmp_lt_u32 s61, 9')
e('s_cbranch_scc0 L_C_end')
e('s_cmp_eq_u32 s3, 7')
e('s_cbranch_scc0 L_C_end')
srd(20, 98, 1152); srd(24, 100, 2304)
e('v_lshlrev_b32 v12, 1, v2')
for k in range(9):
    e(f'buffer_load_ushort v{16+k}, v12, s[20:23], 0 offen offset:{k*128}')
    e(f'buffer_load_ushort v{32+k}, v12, s[{S_X}:{S_X+3}], 0 offen offset:{k*128}')
    e(f'buffer_load_ushort v{48+k}, v12, s[{S_X}:{S_X+3}], 0 offen offset:{k*128+1152}')
e('s_waitcnt vmcnt(0)')
e('v_mov_b32 v60, 0'); e('v_mov_b32 v61, 0')
for k in range(9):
    e(f'v_lshlrev_b32 v{16+k}, 16, v{16+k}')
    e(f'v_lshlrev_b32 v{32+k}, 16, v{32+k}')
    e(f'v_lshlrev_b32 v{48+k}, 16, v{48+k}')
    e(f'v_mul_f32 v{32+k}, v{32+k}, v{16+k}')
    e(f'v_mul_f32 v{48+k}, v{48+k}, v{16+k}')
    e(f'v_cvt_pk_bf16_f32 v62, v{32+k}, v{48+k}')
    unpack(63, 64, 62)
    e('v_add_f32 v60, v60, v63'); e('v_add_f32 v61, v61, v64')
e('s_nop 1')
row_reduce([60, 61], 'add')
xrow_reduce([60, 61], [62, 63], 'add')
e('v_cvt_pk_bf16_f32 v62, v60, v61')
unpack(60, 61, 62)
e(f's_mov_b32 s33, {f32hex(-1.4426950408889634)}')
e('v_mul_f32 v60, s33, v60'); e('v_mul_f32 v61, s33, v61')
e('v_exp_f32 v60, v60'); e('v_exp_f32 v61, v61'); e('s_nop 0')
e('v_add_f32 v60, 1.0, v60'); e('v_add_f32 v61, 1.0, v61')
e('v_rcp_f32 v60, v60'); e('v_rcp_f32 v61, v61'); e('s_nop 0')
e('v_cvt_pk_bf16_f32 v62, v60, v61')
unpack(60, 61, 62)
e('v_cmp_le_u32 vcc, 32, v2'); e('s_nop 1')
e('v_cndmask_b32 v60, v60, v61, vcc')
for m in range(2):
    def em():
        e('s_lshl_b32 s34, s61, 11')
        e(f's_add_u32 s34, s34, {FLG_O + m*144*128}')
    poll_flags(em, 16, 12, 16)
e('v_lshlrev_b32 v12, 4, v2')
e('s_lshl_b32 s34, s61, 14')
e(f's_add_u32 s34, s34, {OUTP}')
for q in range(1, 4): e(f's_add_u32 s{34+q}, s34, {q*4096}')
e(f's_add_u32 s50, s34, {144*1024}')
for q in range(1, 4): e(f's_add_u32 s{50+q}, s50, {q*4096}')
acc_init = [True]
for m in range(2):
    base = 34 if m == 0 else 50
    def loads():
        for t in range(16):
            e(f'buffer_load_dwordx4 v[{64+4*t if t<16 else 0}:{67+4*t}], v12, {WSR}, s{base+t//4} offen offset:{(t%4)*1024} sc1')
    tagged_loop(loads, [64+4*t+1 for t in range(16)] + [64+4*t+3 for t in range(16)], 14, 15)
    d = 16 + 2*m
    e(f'v_mov_b32 v{d}, v64'); e(f'v_mov_b32 v{d+1}, v66')
    for t in range(1, 16):
        e(f'v_add_f32 v{d}, v{d}, v{64+4*t}'); e(f'v_add_f32 v{d+1}, v{d+1}, v{66+4*t}')
e('v_cvt_pk_bf16_f32 v62, v16, v17'); unpack(16, 17, 62)
e('v_cvt_pk_bf16_f32 v62, v18, v19'); unpack(18, 19, 62)
e('v_sub_f32 v61, 1.0, v60')
e('v_cvt_pk_bf16_f32 v62, v61, v61'); e('v_lshlrev_b32 v61, 16, v62')
e('v_mul_f32 v16, v60, v16'); e('v_mul_f32 v17, v60, v17')
e('v_cvt_pk_bf16_f32 v62, v16, v17'); unpack(16, 17, 62)
e('v_mul_f32 v18, v61, v18'); e('v_mul_f32 v19, v61, v19')
e('v_cvt_pk_bf16_f32 v62, v18, v19'); unpack(18, 19, 62)
e('v_add_f32 v16, v16, v18'); e('v_add_f32 v17, v17, v19')
e('v_cvt_pk_bf16_f32 v62, v16, v17')
e('v_lshrrev_b32 v12, 5, v2')
e('v_mul_u32_u24 v12, 1152, v12')
e('v_and_b32 v13, 31, v2')
e('v_lshl_add_u32 v12, v13, 2, v12')
e('s_lshl_b32 s34, s61, 7')
e('buffer_store_dword v62, v12, s[24:27], s34 offen')
lab('L_C_end')
TS()
ts_dump()
e('s_endpgm')
lab('L_bail')
e('s_endpgm')
lab('L_exit')
e('s_endpgm')
out += ['.section .rodata,"a"', '.p2align 6', f'.amdhsa_kernel {NAME}', '  .amdhsa_next_free_vgpr 128', '  .amdhsa_next_free_sgpr 102',
  '  .amdhsa_accum_offset 128', '  .amdhsa_group_segment_fixed_size 0', '  .amdhsa_kernarg_size 120', '  .amdhsa_user_sgpr_count 2',
  '  .amdhsa_user_sgpr_kernarg_segment_ptr 1', '  .amdhsa_system_sgpr_workgroup_id_x 1', '.end_amdhsa_kernel']
open(sys.argv[1], 'w').write(HEADER + f'; @launch grid=(256,1,1) block=(1024,1,1) lds={(L_END+255)//256*256}\n' + '\n'.join(out) + '\n')
print('LDS', L_END, 'stamps', nA, ts_n[0])
```

```python
import sys, struct, re, os

REF = open('gated_mix__gqa_block_cached__compressed_kv_cla__decode.s.ref').read()
HEADER = REF.split('; Override')[0]
NAME = 'gated_mix__gqa_block_cached__compressed_kv_cla__decode_kernel'
TSTAMP = int(os.environ.get('TSTAMP', '0'))
KDEPTH = int(os.environ.get('KDEPTH', '4'))
VDEPTH = int(os.environ.get('VDEPTH', '4'))
QLW = int(os.environ.get('QLW', '1'))
NOA = int(os.environ.get('NOA', '0'))
SLEEP = int(os.environ.get('SLEEP', '2'))

FLG_Q, FLG_U, FLG_BP, FLG_V, FLG_AP, FLG_O = [0xC00000 + k*0x10000 for k in range(6)]
FS = 7
QP   = 0x010000
QABS = 0x090000
AP   = 0x0B0000
AML  = 0x130000
BML  = 0x140000
CTXP = 0x150000
OUTP = 0x1D0000
TSB  = 0x280000
BP   = 0x400000
WS_USED = 0xD00000

CSC = 0.08838834764831845 * 1.4426950408889634
def f32hex(x): return '0x%08x' % struct.unpack('<I', struct.pack('<f', x))[0]

out = []
def e(s):
    m = re.search(r'offset:(\d+)', s)
    if m and s.startswith('buffer_'): assert int(m.group(1)) < 4096, s
    if m and s.startswith('ds_') and 'swizzle' not in s: assert int(m.group(1)) < 65536, s
    out.append('  ' + s)
def lab(s): out.append(s + ':')
_uid = [0]
def uid(p):
    _uid[0] += 1
    return f'L_{p}_{_uid[0]}'

KA = dict(A_x=0, A_k=8, A_v=16, A_wq=24, A_wo=32, B_x=40, B_ckv=48, B_wq=56, B_wuk=64, B_wuv=72, B_wo=80, gate=88, out=96, dbg=104, ws=112)

def srd(s, plo, nbytes):
    e(f's_mov_b32 s{s}, s{plo}')
    e(f's_and_b32 s{s+1}, s{plo+1}, 0xffff')
    e(f's_mov_b32 s{s+2}, {nbytes}')
    e(f's_mov_b32 s{s+3}, 0x20000')

def unpack(lo, hi, src):
    e(f'v_lshlrev_b32 v{lo}, 16, v{src}')
    e(f'v_and_b32 v{hi}, 0xffff0000, v{src}')

def row_reduce(regs, op='add'):
    for sh in (8, 4, 2, 1):
        for r in regs:
            e(f'v_{op}_f32_dpp v{r}, v{r}, v{r} row_ror:{sh} row_mask:0xf bank_mask:0xf')
        if len(regs) < 3: e('s_nop 1')

def xrow_reduce(regs, tmp, op='add'):
    for r, t in zip(regs, tmp): e(f'v_mov_b32 v{t}, v{r}')
    if len(regs) < 2: e('s_nop 1')
    for r, t in zip(regs, tmp): e(f'v_permlane16_swap_b32 v{r}, v{t}')
    if len(regs) < 2: e('s_nop 1')
    for r, t in zip(regs, tmp): e(f'v_{op}_f32 v{r}, v{r}, v{t}')
    for r, t in zip(regs, tmp): e(f'v_mov_b32 v{t}, v{r}')
    if len(regs) < 2: e('s_nop 1')
    for r, t in zip(regs, tmp): e(f'v_permlane32_swap_b32 v{r}, v{t}')
    if len(regs) < 2: e('s_nop 1')
    for r, t in zip(regs, tmp): e(f'v_{op}_f32 v{r}, v{r}, v{t}')

S_WS, S_DBG, S_X = 4, 8, 12
WSR = f's[{S_WS}:{S_WS+3}]'
STAG = 39
ts_n = [0]
def TS():
    if TSTAMP:
        k = ts_n[0]; ts_n[0] += 1
        assert k < 10
        e(f's_memrealtime s[{64+2*k}:{65+2*k}]')

def ts_dump():
    if not TSTAMP: return
    e('s_waitcnt lgkmcnt(0)')
    e('s_lshl_b32 s32, s2, 4'); e('s_add_u32 s32, s32, s63'); e('s_lshl_b32 s32, s32, 7'); e(f's_add_u32 s32, s32, {TSB}')
    e('s_mov_b64 exec, 1')
    e('v_mov_b32 v2, 0')
    for k in range(ts_n[0]):
        e(f'v_mov_b32 v4, s{64+2*k}'); e(f'v_mov_b32 v5, s{65+2*k}')
        e(f'buffer_store_dwordx2 v[4:5], v2, {WSR}, s32 offen offset:{k*8}')
        e('s_nop 1')
    e('s_mov_b64 exec, -1')

C_Q, C_U, C_BP, C_V, C_A, C_O, C_O2 = 0, 4, 8, 12, 16, 20, 24
C_BAR = 64
L_FLG = 128
L_QA   = 256
L_QB   = L_QA + 512
L_UO   = L_QB + 1024
L_BST  = L_UO + 256
L_AML  = L_BST + 256
L_AO   = L_AML + 256
L_P    = L_AO + 8192
L_OV   = L_P + 4608
L_RED  = L_OV + 4096
QS = 1040
L_QABS = L_RED + 24576
L_S    = L_QABS + 32*QS
L_CKV  = L_S + 8192
RS = 1056
L_END  = L_CKV + 64*RS
assert L_END <= 163840, L_END
L_BPS = L_RED
assert L_S + 8192 - L_RED >= 65536

def spin_guard():
    e('s_add_u32 s62, s62, 1')
    e('s_cmp_gt_u32 s62, 0x1000000')
    e('s_cbranch_scc1 L_bail')

def cbar(k, va, vt, st=32):
    L = uid('cbar')
    e('s_waitcnt lgkmcnt(0)')
    e(f'v_mov_b32 v{va}, {C_BAR + 4*k}')
    e(f'v_mov_b32 v{vt}, 1')
    e('s_mov_b64 exec, 1')
    e(f'ds_add_u32 v{va}, v{vt}')
    e('s_mov_b64 exec, -1')
    lab(L)
    e(f'ds_read_b32 v{vt}, v{va}')
    e('s_waitcnt lgkmcnt(0)')
    e(f'v_readfirstlane_b32 s{st}, v{vt}')
    e('s_nop 0')
    e(f's_cmp_ge_u32 s{st}, 8')
    e(f's_cbranch_scc1 {L}_d')
    spin_guard()
    e('s_sleep 0')
    e(f's_branch {L}')
    lab(L + '_d')

def lds_wait(idx, va, vt, st=32):
    L = uid('lw')
    e(f'v_mov_b32 v{va}, {L_FLG + 4*idx}')
    lab(L)
    e(f'ds_read_b32 v{vt}, v{va}')
    e('s_waitcnt lgkmcnt(0)')
    e(f'v_readfirstlane_b32 s{st}, v{vt}')
    e('s_nop 0')
    e(f's_cmp_lg_u32 s{st}, 0')
    e(f's_cbranch_scc1 {L}_d')
    spin_guard()
    e('s_sleep 1')
    e(f's_branch {L}')
    lab(L + '_d')

def lds_set(idx, va, vt):
    e('s_waitcnt lgkmcnt(0)')
    e(f'v_mov_b32 v{va}, {L_FLG + 4*idx}')
    e(f'v_mov_b32 v{vt}, 1')
    e(f'ds_write_b32 v{va}, v{vt}')

def last_arriver(cnt, n, va, vt, skip_label, st=32):
    e('s_waitcnt lgkmcnt(0)')
    e(f'v_mov_b32 v{va}, {cnt}')
    e(f'v_mov_b32 v{vt}, 1')
    e('s_mov_b64 exec, 1')
    e(f'ds_add_rtn_u32 v{vt}, v{va}, v{vt}')
    e('s_waitcnt lgkmcnt(0)')
    e('s_mov_b64 exec, -1')
    e(f'v_readfirstlane_b32 s{st}, v{vt}')
    e('s_nop 0')
    e(f's_cmp_lg_u32 s{st}, {n-1}')
    e(f's_cbranch_scc1 {skip_label}')

L_TAG = 192
def master_get_tag(vt, va):
    L = uid('tag')
    lab(L)
    e(f'v_mov_b32 v{vt}, 0')
    e(f'buffer_load_dword v{vt}, v{vt}, s[{S_DBG}:{S_DBG+3}], 0 offen sc1')
    e('s_waitcnt vmcnt(0)')
    e(f'v_readfirstlane_b32 s{STAG}, v{vt}')
    spin_guard()
    e(f's_cmp_lg_u32 s{STAG}, 0')
    e(f's_cbranch_scc1 {L}_d')
    e('s_sleep 2')
    e(f's_branch {L}')
    lab(L + '_d')
    e(f'v_mov_b32 v{va}, {L_TAG}')
    e(f'ds_write_b32 v{va}, v{vt}')

def get_tag(vt):
    L = uid('tag')
    lab(L)
    e(f'v_mov_b32 v{vt}, {L_TAG}')
    e(f'ds_read_b32 v{vt}, v{vt}')
    e('s_waitcnt lgkmcnt(0)')
    e(f'v_readfirstlane_b32 s{STAG}, v{vt}')
    spin_guard()
    e(f's_cmp_lg_u32 s{STAG}, 0')
    e(f's_cbranch_scc1 {L}_d')
    e('s_sleep 1')
    e(f's_branch {L}')
    lab(L + '_d')

def set_flag(flg_off, idx_sgpr, vt):
    e(f's_lshl_b32 s33, s{idx_sgpr}, {FS}')
    e(f's_add_u32 s33, s33, {flg_off}')
    e(f'v_mov_b32 v{vt}, 0')
    e(f'v_mov_b32 v{vt+1}, s{STAG}')
    e('s_mov_b64 exec, 1')
    e(f'buffer_store_dword v{vt+1}, v{vt}, {WSR}, s33 offen sc1')
    e('s_mov_b64 exec, -1')

def poll_flags(soff_expr_emit, nflags, vaddr, vf):
    L = uid('poll')
    soff_expr_emit()
    per = (nflags + 63) // 64
    nl = min(nflags, 64)
    e(f'v_lshlrev_b32 v{vaddr}, {FS}, v2')
    if nl < 64: e(f's_mov_b64 exec, {hex((1 << nl) - 1)}')
    for j in range(1, per): e(f's_add_u32 s{50+j}, s34, {j*64*128}')
    lab(L)
    for j in range(per):
        e(f'buffer_load_dword v{vf+j}, v{vaddr}, {WSR}, s{34 if j == 0 else 50+j} offen sc1')
    e('s_waitcnt vmcnt(0)')
    e(f'v_cmp_ne_u32 vcc, s{STAG}, v{vf}')
    for j in range(1, per):
        e(f'v_cmp_ne_u32 s[36:37], s{STAG}, v{vf+j}')
        e('s_or_b64 vcc, vcc, s[36:37]')
    e(f's_cbranch_vccz {L}_d')
    spin_guard()
    e(f's_sleep {SLEEP}')
    e(f's_branch {L}')
    lab(L + '_d')
    e('s_mov_b64 exec, -1')

def tagged_loop(emit_loads, tag_regs, vmin, vmax, mask=None):
    L = uid('tl')
    lab(L)
    emit_loads()
    e('s_waitcnt vmcnt(0)')
    tr = list(tag_regs)
    e(f'v_mov_b32 v{vmin}, s{STAG}')
    e(f'v_mov_b32 v{vmax}, s{STAG}')
    while tr:
        if len(tr) >= 2:
            a, b = tr.pop(0), tr.pop(0)
            e(f'v_min3_u32 v{vmin}, v{vmin}, v{a}, v{b}')
            e(f'v_max3_u32 v{vmax}, v{vmax}, v{a}, v{b}')
        else:
            a = tr.pop(0)
            e(f'v_min_u32 v{vmin}, v{vmin}, v{a}')
            e(f'v_max_u32 v{vmax}, v{vmax}, v{a}')
    e(f'v_cmp_ne_u32 vcc, v{vmin}, v{vmax}')
    e(f's_cbranch_vccz {L}_d')
    spin_guard()
    e(f's_sleep {SLEEP}')
    e(f's_branch {L}')
    lab(L + '_d')

LF_Q, LF_U, LF_BP, LF_O0, LF_O1 = 0, 1, 2, 3, 4

out += ['.amdgcn_target "amdgcn-amd-amdhsa--gfx950"', '.text', f'.globl {NAME}', '.p2align 8', f'.type {NAME},@function']
lab(NAME)
e('s_cmp_ge_u32 s2, 256')
e('s_cbranch_scc1 L_exit')
TS()
e(f's_load_dwordx4 s[44:47], s[0:1], {KA["dbg"]}')
e(f's_load_dwordx2 s[48:49], s[0:1], {KA["A_x"]}')
e('v_lshrrev_b32 v1, 6, v0')
e('v_and_b32 v2, 63, v0')
e('v_readfirstlane_b32 s3, v1')
e('v_lshrrev_b32 v3, 4, v2')
e('v_and_b32 v4, 15, v2')
e(f's_mov_b32 s40, {f32hex(CSC)}')
e('s_mov_b32 s63, s3')
e('s_mov_b32 s62, 0')
e('s_cmp_ge_u32 s3, 8')
e('s_cbranch_scc1 L_C')

e(f's_load_dwordx4 s[52:55], s[0:1], {KA["A_k"]}')
e('s_waitcnt lgkmcnt(0)')
srd(S_WS, 46, WS_USED); srd(S_DBG, 44, 256)
srd(16, 52, 33554432); srd(20, 54, 33554432)
e('s_lshl_b32 s32, s2, 17')
e('s_lshl_b32 s33, s3, 14')
e('s_add_u32 s32, s32, s33')
e('v_lshlrev_b32 v5, 8, v3')
e('v_lshl_add_u32 v5, v4, 4, v5')
e('v_add_u32 v5, s32, v5')
e('s_mov_b32 s44, 0'); e('s_mov_b32 s45, 4096'); e('s_mov_b32 s46, 8192'); e('s_mov_b32 s47, 12288')
KB = 64
def kload(i, srdn):
    if NOA: return
    e(f'buffer_load_dwordx4 v[{KB+4*i}:{KB+4*i+3}], v5, s[{srdn}:{srdn+3}], s{44+i//4} offen offset:{(i%4)*1024} nt')
e('s_cmp_lg_u32 s3, 0')
e('s_cbranch_scc1 L_A_noinit')
e('v_lshlrev_b32 v6, 2, v2')
e('v_mov_b32 v7, 0')
e('ds_write_b32 v6, v7')
e('s_waitcnt lgkmcnt(0)')
lab('L_A_noinit')
e('s_barrier')
if QLW:
    Lq = uid('qlw')
    e('v_mov_b32 v6, 28')
    lab(Lq)
    e('ds_read_b32 v7, v6'); e('s_waitcnt lgkmcnt(0)'); e('v_readfirstlane_b32 s32, v7'); e('s_nop 0')
    e('s_cmp_ge_u32 s32, 8'); e(f's_cbranch_scc1 {Lq}_d'); spin_guard(); e('s_sleep 1'); e(f's_branch {Lq}')
    lab(Lq + '_d')
for i in range(16):
    if i >= KDEPTH: e(f's_waitcnt vmcnt({KDEPTH-1})')
    kload(i, 16)
TS()
get_tag(6)
lds_wait(LF_Q, 6, 7)
TS()
e(f'v_lshlrev_b32 v10, 4, v4')
e(f'ds_read_b128 v[48:51], v10 offset:{L_QA}')
e(f'ds_read_b128 v[52:55], v10 offset:{L_QA+256}')
for k in range(32): e(f'v_mov_b32 v{16+k}, 0')
e('s_waitcnt vmcnt(0) lgkmcnt(0)')
for i in range(16):
    for j in range(4):
        for hq in range(2):
            e(f'v_dot2c_f32_bf16 v{16+2*i+hq}, v{KB+4*i+j}, v{48+4*hq+j}')
for i in range(VDEPTH): kload(i, 20)
TS()
e('s_nop 3')
row_reduce([16+k for k in range(32)])
for hq in range(2):
    e(f'v_max_f32 v{56+hq}, v{16+hq}, v{18+hq}')
    for i in range(2, 16):
        e(f'v_max_f32 v{56+hq}, v{56+hq}, v{16+2*i+hq}')
xrow_reduce([56, 57], [58, 59], 'max')
for hq in range(2):
    e(f'v_mul_f32 v{56+hq}, s40, v{56+hq}')
for i in range(16):
    for hq in range(2):
        e(f'v_fma_f32 v{16+2*i+hq}, v{16+2*i+hq}, s40, -v{56+hq}')
for k in range(32): e(f'v_exp_f32 v{16+k}, v{16+k}')
e('s_nop 0')
for hq in range(2):
    e(f'v_add_f32 v{58+hq}, v{16+hq}, v{18+hq}')
    for i in range(2, 16):
        e(f'v_add_f32 v{58+hq}, v{58+hq}, v{16+2*i+hq}')
xrow_reduce([58, 59], [60, 61], 'add')
AC = 48
e('v_mov_b32 v10, v56'); e('v_mov_b32 v11, v58'); e('v_mov_b32 v12, v57'); e('v_mov_b32 v13, v59')
for k in range(16): e(f'v_mov_b32 v{AC+k}, 0')
for i in range(16):
    nissued = min(16, i + VDEPTH)
    e(f's_waitcnt vmcnt({nissued - i - 1})')
    for j in range(4):
        unpack(14, 15, KB+4*i+j)
        for hq in range(2):
            e(f'v_fmac_f32 v{AC+hq*8+2*j}, v{16+2*i+hq}, v14')
            e(f'v_fmac_f32 v{AC+hq*8+2*j+1}, v{16+2*i+hq}, v15')
    if i + VDEPTH < 16: kload(i + VDEPTH, 20)
TS()
xrow_reduce([AC+k for k in range(16)], [64+k for k in range(16)], 'add')
e('s_lshl_b32 s37, s3, 10')
e('v_lshlrev_b32 v7, 5, v4')
e('v_add_u32 v7, s37, v7')
e('s_lshl_b32 s37, s3, 4')
e('v_mov_b32 v6, s37')
e('s_mov_b64 exec, 0xffff')
e(f'ds_write_b128 v7, v[{AC}:{AC+3}] offset:{L_AO}')
e(f'ds_write_b128 v7, v[{AC+4}:{AC+7}] offset:{L_AO+16}')
e(f'ds_write_b128 v7, v[{AC+8}:{AC+11}] offset:{L_AO+512}')
e(f'ds_write_b128 v7, v[{AC+12}:{AC+15}] offset:{L_AO+528}')
e(f'ds_write_b128 v6, v[10:13] offset:{L_AML}')
e('s_mov_b64 exec, -1')
last_arriver(C_A, 8, 6, 7, 'L_A_done')
e('v_lshrrev_b32 v6, 5, v2')
e('v_lshlrev_b32 v7, 3, v6')
for s in range(8):
    e(f'ds_read_b64 v[{64+2*s}:{65+2*s}], v7 offset:{L_AML+s*16}')
e('v_lshlrev_b32 v9, 4, v2')
for s in range(8):
    e(f'ds_read_b128 v[{20+4*s}:{23+4*s}], v9 offset:{L_AO+s*1024}')
e('s_waitcnt lgkmcnt(0)')
e('v_max_f32 v12, v64, v66')
for s in range(2, 8): e(f'v_max_f32 v12, v12, v{64+2*s}')
for s in range(8): e(f'v_sub_f32 v{64+2*s}, v{64+2*s}, v12')
for s in range(8): e(f'v_exp_f32 v{64+2*s}, v{64+2*s}')
e('v_mov_b32 v13, 0')
for k in range(4): e(f'v_mov_b32 v{16+k}, 0')
for s in range(8):
    e(f'v_fmac_f32 v13, v{64+2*s}, v{65+2*s}')
    for k in range(4): e(f'v_fmac_f32 v{16+k}, v{64+2*s}, v{20+4*s+k}')
e(f'v_mov_b32 v24, v16'); e(f'v_mov_b32 v25, s{STAG}'); e('v_mov_b32 v26, v17'); e(f'v_mov_b32 v27, s{STAG}')
e(f'v_mov_b32 v28, v18'); e(f'v_mov_b32 v29, s{STAG}'); e('v_mov_b32 v30, v19'); e(f'v_mov_b32 v31, s{STAG}')
e('s_lshl_b32 s34, s2, 11')
e(f's_add_u32 s34, s34, {AP}')
e('v_lshlrev_b32 v9, 5, v2')
e(f'buffer_store_dwordx4 v[24:27], v9, {WSR}, s34 offen sc1')
e(f'buffer_store_dwordx4 v[28:31], v9, {WSR}, s34 offen offset:16 sc1')
e('v_mov_b32 v24, v12'); e('v_mov_b32 v26, v13')
e('s_lshl_b32 s34, s2, 5')
e(f's_add_u32 s34, s34, {AML}')
e('v_lshlrev_b32 v7, 4, v6')
e('v_and_b32 v6, 31, v2')
e('v_cmp_eq_u32 vcc, 0, v6')
e('s_and_saveexec_b64 s[36:37], vcc')
e(f'buffer_store_dwordx4 v[24:27], v7, {WSR}, s34 offen sc1')
e('s_mov_b64 exec, s[36:37]')
set_flag(FLG_AP, 2, 6)
lab('L_A_done')
TS()
ts_dump()
e('s_endpgm')
nA = ts_n[0]

lab('L_C')
ts_n[0] = 1
e('s_setprio 2')
e(f's_load_dwordx4 s[84:87], s[0:1], {KA["A_wq"]}')
e(f's_load_dwordx8 s[88:95], s[0:1], {KA["B_ckv"]}')
e(f's_load_dwordx4 s[96:99], s[0:1], {KA["B_wo"]}')
e(f's_load_dwordx2 s[100:101], s[0:1], {KA["out"]}')
assert not TSTAMP or True
e('s_sub_u32 s3, s3, 8')
e('s_waitcnt lgkmcnt(0)')
srd(S_WS, 46, WS_USED); srd(S_DBG, 44, 256); srd(S_X, 48, 2304)
e('s_lshr_b32 s32, s2, 7')
e('s_cmp_eq_u32 s32, 0')
e('s_cselect_b32 s50, s84, s90')
e('s_cselect_b32 s51, s85, s91')
srd(16, 50, 4718592)
srd(20, 92, 4194304)
srd(24, 88, 8388608)
e('s_or_b32 s32, s2, s3')
e('s_cmp_lg_u32 s32, 0')
e('s_cbranch_scc1 L_C_notag')
e('s_memrealtime s[60:61]')
e('s_waitcnt lgkmcnt(0)')
e('s_or_b32 s60, s60, 1')
e('v_mov_b32 v6, 0')
e('v_mov_b32 v7, s60')
e('s_mov_b64 exec, 1')
e(f'buffer_store_dword v7, v6, s[{S_DBG}:{S_DBG+3}], 0 offen sc1')
e('s_mov_b64 exec, -1')
lab('L_C_notag')
e('s_and_b32 s33, s2, 3')
e('s_mul_i32 s33, s33, 144')
e('s_mul_i32 s34, s3, 18')
e('s_add_u32 s33, s33, s34')
e('v_lshrrev_b32 v5, 5, v2')
e('v_add_u32 v5, s33, v5')
e('v_lshlrev_b32 v7, 1, v5')
e('s_bfe_u32 s35, s2, 0x50002')
e('s_lshl_b32 s35, s35, 8')
e('v_lshlrev_b32 v6, 13, v5')
e('v_and_b32 v8, 31, v2')
e('v_lshl_add_u32 v6, v8, 3, v6')
e('v_add_u32 v6, s35, v6')
e('s_mov_b32 s36, 0')
for i in range(9):
    e(f'buffer_load_dwordx2 v[{16+2*i}:{17+2*i}], v6, s[16:19], s36 offen nt')
    if i < 8: e('s_add_u32 s36, s36, 16384')
for i in range(9):
    for b in range(2):
        e(f'buffer_load_ushort v{40+2*i+b}, v7, s[{S_X}:{S_X+3}], 0 offen offset:{i*4+b*1152}')
e('s_lshr_b32 s42, s2, 3')
e('s_and_b32 s43, s2, 7')
e('s_lshl_b32 s33, s43, 6')
e('s_lshl_b32 s34, s3, 3')
e('s_add_u32 s33, s33, s34')
e('v_add_u32 v9, s33, v3')
e('v_lshlrev_b32 v10, 13, v9')
e('s_lshl_b32 s34, s42, 8')
e('v_lshl_add_u32 v10, v4, 4, v10')
e('v_add_u32 v10, s34, v10')
e('s_mov_b32 s36, 32768')
e('buffer_load_dwordx4 v[64:67], v10, s[20:23], 0 offen nt')
e('buffer_load_dwordx4 v[68:71], v10, s[20:23], s36 offen nt')
e('s_barrier')
e('s_cmp_lg_u32 s3, 0')
e('s_cbranch_scc1 L_C_nt')
master_get_tag(12, 13)
lab('L_C_nt')
e('s_waitcnt vmcnt(2)')
if QLW:
    e('v_mov_b32 v12, 28'); e('v_mov_b32 v13, 1'); e('s_mov_b64 exec, 1'); e('ds_add_u32 v12, v13'); e('s_mov_b64 exec, -1')
for k in range(18): e(f'v_lshlrev_b32 v{40+k}, 16, v{40+k}')
for k in range(8): e(f'v_mov_b32 v{72+k}, 0')
for i in range(9):
    for j in range(2):
        unpack(12, 13, 16+2*i+j)
        for b in range(2):
            e(f'v_fmac_f32 v{72+4*b+2*j}, v{40+2*i+b}, v12')
            e(f'v_fmac_f32 v{72+4*b+2*j+1}, v{40+2*i+b}, v13')
e('s_lshl_b32 s33, s3, 1')
e('v_lshrrev_b32 v12, 5, v2')
e('v_add_u32 v12, s33, v12')
e('v_lshlrev_b32 v12, 10, v12')
e('v_lshl_add_u32 v12, v8, 4, v12')
e(f'v_add_u32 v12, {L_RED}, v12')
e('ds_write_b128 v12, v[72:75]')
e('ds_write_b128 v12, v[76:79] offset:512')
TS()
get_tag(13)
last_arriver(C_Q, 8, 12, 13, 'L_C_qdone')
e('v_lshlrev_b32 v12, 4, v2')
e(f'v_add_u32 v13, {L_RED}, v12')
for q in range(2):
    for s in range(8):
        e(f'ds_read_b128 v[{16+4*s}:{19+4*s}], v13 offset:{(q*8+s)*1024}')
    e('s_waitcnt lgkmcnt(0)')
    if q == 0:
        for k in range(4): e(f'v_mov_b32 v{48+k}, v{16+k}')
        rng = range(1, 8)
    else: rng = range(8)
    for s in rng:
        for k in range(4): e(f'v_add_f32 v{48+k}, v{48+k}, v{16+4*s+k}')
def store4tagged(src, vaddr, soff, tmp):
    e(f'v_mov_b32 v{tmp}, v{src}'); e(f'v_mov_b32 v{tmp+1}, s{STAG}'); e(f'v_mov_b32 v{tmp+2}, v{src+1}'); e(f'v_mov_b32 v{tmp+3}, s{STAG}')
    e(f'v_mov_b32 v{tmp+4}, v{src+2}'); e(f'v_mov_b32 v{tmp+5}, s{STAG}'); e(f'v_mov_b32 v{tmp+6}, v{src+3}'); e(f'v_mov_b32 v{tmp+7}, s{STAG}')
    e(f'buffer_store_dwordx4 v[{tmp}:{tmp+3}], v{vaddr}, {WSR}, s{soff} offen sc1')
    e(f'buffer_store_dwordx4 v[{tmp+4}:{tmp+7}], v{vaddr}, {WSR}, s{soff} offen offset:16 sc1')
e('s_lshl_b32 s34, s2, 11')
e(f's_add_u32 s34, s34, {QP}')
e('v_lshlrev_b32 v12, 5, v2')
store4tagged(48, 12, 34, 16)
lab('L_C_qdone')
e('s_cmp_lg_u32 s3, 0')
e('s_cbranch_scc1 L_C_w1')
e('s_bfe_u32 s35, s2, 0x40003')
e('s_lshr_b32 s36, s2, 7')
e('s_lshl_b32 s34, s35, 14')
e('s_lshl_b32 s37, s36, 10')
e('s_add_u32 s34, s34, s37')
e(f's_add_u32 s34, s34, {QP}')
e('v_lshrrev_b32 v12, 5, v2')
e('v_lshlrev_b32 v12, 13, v12')
e('v_and_b32 v13, 31, v2')
e('v_lshl_add_u32 v12, v13, 5, v12')
e('s_add_u32 s35, s42, 32')
e('s_lshl_b32 s35, s35, 13')
e(f's_add_u32 s35, s35, {QP}')
e('v_lshlrev_b32 v15, 5, v2')
e('s_add_u32 s36, s34, 4096')
e('s_add_u32 s37, s35, 4096')
def loads():
    for kq in range(4):
        for hf in range(2):
            r = 16 + (kq*2+hf)*4
            e(f'buffer_load_dwordx4 v[{r}:{r+3}], v12, {WSR}, s{34 if kq<2 else 36} offen offset:{(kq%2)*2048+hf*16} sc1')
    for kq in range(4):
        for hf in range(2):
            r = 72 + (kq*2+hf)*4
            e(f'buffer_load_dwordx4 v[{r}:{r+3}], v15, {WSR}, s{35 if kq<2 else 37} offen offset:{(kq%2)*2048+hf*16} sc1')
tagged_loop(loads, [16+4*k+1 for k in range(8)] + [16+4*k+3 for k in range(8)] + [72+4*k+1 for k in range(8)] + [72+4*k+3 for k in range(8)], 48, 49)
for base, dst in ((16, 48), (72, 52)):
    for hf in range(2):
        for p in range(2):
            d = dst + hf*2 + p
            e(f'v_add_f32 v{d}, v{base+(0*2+hf)*4+2*p}, v{base+(1*2+hf)*4+2*p}')
            e(f'v_add_f32 v{d}, v{d}, v{base+(2*2+hf)*4+2*p}')
            e(f'v_add_f32 v{d}, v{d}, v{base+(3*2+hf)*4+2*p}')
e('v_cvt_pk_bf16_f32 v32, v48, v49')
e('v_cvt_pk_bf16_f32 v33, v50, v51')
e('v_lshlrev_b32 v12, 3, v2')
e(f'ds_write_b64 v12, v[32:33] offset:{L_QA}')
e('v_cvt_pk_bf16_f32 v20, v52, v53')
e('v_cvt_pk_bf16_f32 v21, v54, v55')
unpack(16, 17, 20); unpack(18, 19, 21)
e('v_lshlrev_b32 v12, 4, v2')
e(f'ds_write_b128 v12, v[16:19] offset:{L_QB}')
lds_set(LF_Q, 12, 13)
lab('L_C_w1')
lds_wait(LF_Q, 12, 13)
TS()
e('v_lshlrev_b32 v13, 5, v4')
e(f'ds_read_b128 v[32:35], v13 offset:{L_QB}')
e(f'ds_read_b128 v[36:39], v13 offset:{L_QB+16}')
e(f'ds_read_b128 v[40:43], v13 offset:{L_QB+512}')
e(f'ds_read_b128 v[44:47], v13 offset:{L_QB+528}')
for k in range(4): e(f'v_mov_b32 v{48+k}, 0')
e('s_waitcnt lgkmcnt(0)')
for i in range(2):
    for j in range(4):
        unpack(12, 13, 64+4*i+j)
        for b in range(2):
            e(f'v_fmac_f32 v{48+2*i+b}, v{32+8*b+2*j}, v12')
            e(f'v_fmac_f32 v{48+2*i+b}, v{32+8*b+2*j+1}, v13')
e('s_nop 1')
row_reduce([48, 49, 50, 51])
e('v_cmp_eq_u32 vcc, 1, v4'); e('s_nop 1'); e('v_cndmask_b32 v48, v48, v49, vcc')
e('v_cmp_eq_u32 vcc, 2, v4'); e('s_nop 1'); e('v_cndmask_b32 v48, v48, v50, vcc')
e('v_cmp_eq_u32 vcc, 3, v4'); e('s_nop 1'); e('v_cndmask_b32 v48, v48, v51, vcc')
e('v_cvt_pk_bf16_f32 v48, v48, v48')
e('v_and_b32 v12, 1, v4')
e('v_lshlrev_b32 v12, 7, v12')
e('v_lshrrev_b32 v13, 1, v4')
e('v_lshl_add_u32 v13, v13, 2, v3')
e('s_lshl_b32 s34, s3, 3')
e('v_add_u32 v13, s34, v13')
e('v_lshl_add_u32 v12, v13, 1, v12')
e('s_mov_b32 exec_lo, 0x000f000f'); e('s_mov_b32 exec_hi, 0x000f000f')
e(f'ds_write_b16 v12, v48 offset:{L_UO}')
e('s_mov_b64 exec, -1')
srd(20, 94, 4194304)
e('s_mov_b32 s36, 32768')
e('buffer_load_dwordx4 v[64:67], v10, s[20:23], 0 offen nt')
e('buffer_load_dwordx4 v[68:71], v10, s[20:23], s36 offen nt')
last_arriver(C_U, 8, 12, 13, 'L_C_udone')
e('v_lshlrev_b32 v12, 3, v2')
e(f'ds_read_b64 v[16:17], v12 offset:{L_UO}')
e('v_lshrrev_b32 v13, 4, v2')
e('v_lshlrev_b32 v13, 16, v13')
e('v_lshl_add_u32 v12, v4, 4, v13')
e('s_lshl_b32 s34, s42, 11')
e('s_lshl_b32 s35, s43, 8')
e('s_add_u32 s34, s34, s35')
e(f's_add_u32 s34, s34, {QABS}')
e('s_waitcnt lgkmcnt(0)')
e('v_mov_b32 v18, v17'); e(f'v_mov_b32 v17, s{STAG}'); e(f'v_mov_b32 v19, s{STAG}')
e('s_mov_b32 exec_lo, -1'); e('s_mov_b32 exec_hi, 0')
e(f'buffer_store_dwordx4 v[16:19], v12, {WSR}, s34 offen sc1')
e('s_mov_b64 exec, -1')
set_flag(FLG_U, 2, 12)
lab('L_C_udone')
e('s_cmp_ge_u32 s2, 128')
e('s_cbranch_scc1 L_C_nockv')
e('s_lshl_b32 s33, s2, 16')
e('s_lshl_b32 s34, s3, 13')
e('s_add_u32 s33, s33, s34')
e('v_lshlrev_b32 v11, 4, v2')
e('s_mul_i32 s34, s3, %d' % (8*RS))
e(f's_add_u32 s34, s34, {L_CKV}')
for i in range(8):
    e('s_mov_b32 m0, s34')
    e('s_nop 0')
    e('buffer_load_dwordx4 v11, s[24:27], s33 offen nt lds')
    if i < 7:
        e('s_add_u32 s33, s33, 1024'); e(f's_add_u32 s34, s34, {RS}')
lab('L_C_nockv')
TS()
e('s_cmp_ge_u32 s2, 128')
e('s_cbranch_scc1 L_C_noB')
e('s_cmp_lg_u32 s3, 0')
e('s_cbranch_scc1 L_C_w2')
def em():
    e(f's_mov_b32 s34, {FLG_U}')
poll_flags(em, 256, 12, 16)
lds_set(LF_U, 12, 13)
lab('L_C_w2')
lds_wait(LF_U, 12, 13)
e('s_lshr_b32 s33, s2, 6')
e('s_lshl_b32 s34, s33, 16')
e('s_lshl_b32 s35, s3, 13')
e('s_add_u32 s34, s34, s35')
e(f's_add_u32 s34, s34, {QABS}')
e('s_add_u32 s35, s34, 4096')
e('v_lshlrev_b32 v12, 4, v2')
def loads():
    for k in range(8):
        e(f'buffer_load_dwordx4 v[{16+4*k}:{19+4*k}], v12, {WSR}, s{34 if k<4 else 35} offen offset:{(k%4)*1024} sc1')
tagged_loop(loads, [16+4*k+1 for k in range(8)] + [16+4*k+3 for k in range(8)], 48, 49)
e(f's_mul_i32 s35, s3, {4*QS}')
e(f's_add_u32 s35, s35, {L_QABS}')
e('v_lshlrev_b32 v13, 3, v2')
e('v_add_u32 v13, s35, v13')
for k in range(8):
    e(f'v_mov_b32 v{16+4*k+1}, v{16+4*k+2}')
for k in range(8):
    e(f'ds_write_b64 v13, v[{16+4*k}:{17+4*k}] offset:{(k//2)*QS+(k%2)*512}')
cbar(0, 12, 13)
e('s_lshr_b32 s35, s3, 2')
e('s_and_b32 s36, s3, 3')
e('s_lshl_b32 s37, s36, 4')
e('v_add_u32 v12, s37, v4')
e(f'v_mul_u32_u24 v12, {RS}, v12')
e('v_lshl_add_u32 v12, v3, 4, v12')
e(f'v_add_u32 v12, {L_CKV}, v12')
e('s_lshl_b32 s37, s35, 4')
e('v_add_u32 v13, s37, v4')
e(f'v_mul_u32_u24 v13, {QS}, v13')
e('v_lshl_add_u32 v13, v3, 4, v13')
e(f'v_add_u32 v13, {L_QABS}, v13')
for k in range(4): e(f'v_mov_b32 v{24+k}, 0')
for half in range(2):
    for q in range(8):
        ks = half*8+q
        e(f'ds_read_b128 v[{28+4*q}:{31+4*q}], v12 offset:{ks*64}')
        e(f'ds_read_b128 v[{72+4*q}:{75+4*q}], v13 offset:{ks*64}')
    e('s_waitcnt lgkmcnt(0)')
    for q in range(8):
        e(f'v_mfma_f32_16x16x32_bf16 v[24:27], v[{28+4*q}:{31+4*q}], v[{72+4*q}:{75+4*q}], v[24:27]')
    e('s_nop 3')
e('s_nop 8')
e('s_lshl_b32 s37, s35, 12')
e('s_lshl_b32 s34, s36, 6')
e('s_add_u32 s37, s37, s34')
e('v_lshlrev_b32 v12, 8, v4')
e('v_lshl_add_u32 v12, v3, 4, v12')
e('v_add_u32 v12, s37, v12')
e(f'v_add_u32 v12, {L_S}, v12')
e('ds_write_b128 v12, v[24:27]')
cbar(1, 12, 13)
e('s_lshl_b32 s37, s3, 2')
e('v_add_u32 v12, s37, v3')
e('v_lshlrev_b32 v13, 8, v12')
e('v_lshl_add_u32 v13, v4, 4, v13')
e(f'v_add_u32 v13, {L_S}, v13')
e('ds_read_b128 v[16:19], v13')
e('s_waitcnt lgkmcnt(0)')
e('v_max_f32 v20, v16, v17')
e('v_max3_f32 v20, v20, v18, v19')
e('s_nop 1')
row_reduce([20], 'max')
e('v_mul_f32 v20, s40, v20')
for k in range(4): e(f'v_fma_f32 v{16+k}, v{16+k}, s40, -v20')
for k in range(4): e(f'v_exp_f32 v{16+k}, v{16+k}')
e('s_nop 0')
e('v_add_f32 v21, v16, v17')
e('v_add_f32 v22, v18, v19')
e('v_add_f32 v21, v21, v22')
e('v_cvt_pk_bf16_f32 v22, v16, v17')
e('v_cvt_pk_bf16_f32 v23, v18, v19')
row_reduce([21], 'add')
e('v_mul_u32_u24 v13, 144, v12')
e('v_lshl_add_u32 v13, v4, 3, v13')
e(f'v_add_u32 v13, {L_P}, v13')
e('ds_write_b64 v13, v[22:23]')
e('v_mov_b32 v24, v20'); e(f'v_mov_b32 v25, s{STAG}'); e('v_mov_b32 v26, v21'); e(f'v_mov_b32 v27, s{STAG}')
e('v_lshlrev_b32 v13, 4, v12')
e('s_lshl_b32 s34, s2, 9')
e(f's_add_u32 s34, s34, {BML}')
e('s_mov_b32 exec_lo, 0x00010001'); e('s_mov_b32 exec_hi, 0x00010001')
e(f'buffer_store_dwordx4 v[24:27], v13, {WSR}, s34 offen sc1')
e('s_mov_b64 exec, -1')
cbar(2, 12, 13)
e('v_mul_u32_u24 v12, 144, v4')
e('v_lshl_add_u32 v12, v3, 4, v12')
e(f'v_add_u32 v12, {L_P}, v12')
for hh in range(2):
    for ks in range(2):
        r = 16 + (hh*2+ks)*4
        e(f'ds_read_b128 v[{r}:{r+3}], v12 offset:{hh*16*144+ks*64}')
e('v_lshrrev_b32 v13, 2, v4')
e('v_lshl_add_u32 v13, v3, 3, v13')
e(f'v_mul_u32_u24 v13, {RS}, v13')
e('v_and_b32 v12, 3, v4')
e('v_lshl_add_u32 v13, v12, 3, v13')
e('s_lshl_b32 s37, s3, 7')
e(f's_add_u32 s37, s37, {L_CKV}')
e('v_add_u32 v13, s37, v13')
for ct in range(4):
    for ks in range(2):
        for t in range(2):
            r = 32 + ((ct*2+ks)*2+t)*2
            e(f'ds_read_b64_tr_b16 v[{r}:{r+1}], v13 offset:{(ks*32+t*4)*RS + ct*32}')
for k in range(32): e(f'v_mov_b32 v{72+k}, 0')
e('s_waitcnt lgkmcnt(0)')
for ct in range(4):
    for hh in range(2):
        for ks in range(2):
            a = 32 + (ct*2+ks)*4
            bq = 16 + (hh*2+ks)*4
            d = 72 + (ct*2+hh)*4
            e(f'v_mfma_f32_16x16x32_bf16 v[{d}:{d+3}], v[{a}:{a+3}], v[{bq}:{bq+3}], v[{d}:{d+3}]')
e('s_nop 15')
TS()
for k in range(8):
    d = 72 + 4*k
    e(f'v_cvt_pk_bf16_f32 v{d}, v{d}, v{d+1}')
    e(f'v_cvt_pk_bf16_f32 v{d+2}, v{d+2}, v{d+3}')
    e(f'v_mov_b32 v{d+1}, s{STAG}')
    e(f'v_mov_b32 v{d+3}, s{STAG}')
e('s_lshl_b32 s37, s3, 13')
e(f's_add_u32 s37, s37, {L_BPS}')
e('v_lshlrev_b32 v12, 8, v4')
e('v_lshl_add_u32 v12, v3, 4, v12')
e('v_add_u32 v12, s37, v12')
for ct in range(4):
    for hh in range(2):
        d = 72 + (ct*2+hh)*4
        e(f'ds_write_b128 v12, v[{d}:{d+3}] offset:{hh*4096+ct*64}')
e('v_lshlrev_b32 v13, 4, v2')
e('v_add_u32 v13, s37, v13')
e('s_waitcnt lgkmcnt(0)')
for k in range(8):
    e(f'ds_read_b128 v[{16+4*k}:{19+4*k}], v13 offset:{k*1024}')
e('s_lshl_b32 s34, s2, 16')
e('s_lshl_b32 s37, s3, 8')
e('s_add_u32 s34, s34, s37')
e(f's_add_u32 s34, s34, {BP}')
e('v_lshlrev_b32 v12, 11, v3')
e('v_lshl_add_u32 v12, v4, 4, v12')
e('s_waitcnt lgkmcnt(0)')
for k in range(8):
    e(f'buffer_store_dwordx4 v[{16+4*k}:{19+4*k}], v12, {WSR}, s34 offen sc1')
    if k < 7: e('s_add_u32 s34, s34, 8192')
e('v_mov_b32 v12, %d' % (C_BAR + 4*6)); e('v_mov_b32 v13, 1')
e('s_mov_b64 exec, 1'); e('ds_add_u32 v12, v13'); e('s_mov_b64 exec, -1')
last_arriver(C_BP, 8, 12, 13, 'L_C_bdone')
set_flag(FLG_BP, 2, 12)
lab('L_C_bdone')
TS()
lab('L_C_noB')
def task_decode(st):
    e(f's_cmp_ge_u32 s{st}, 144')
    e('s_cselect_b32 s58, 1, 0')
    e('s_mul_i32 s59, s58, 144')
    e(f's_sub_u32 s59, s{st}, s59')
    e('s_and_b32 s60, s59, 15')
    e('s_lshr_b32 s59, s59, 4')
def o_prefetch(st, reg):
    task_decode(st)
    e('s_cmp_eq_u32 s58, 0')
    e('s_cselect_b32 s54, s86, s96')
    e('s_cselect_b32 s55, s87, s97')
    srd(24, 54, 4718592)
    e('s_lshl_b32 s33, s60, 8')
    e('s_lshl_b32 s34, s3, 5')
    e('s_add_u32 s33, s33, s34')
    e('v_lshrrev_b32 v12, 3, v2')
    e('v_add_u32 v12, s33, v12')
    e('s_movk_i32 s34, 1152')
    e('v_mul_lo_u32 v12, v12, s34')
    e('v_and_b32 v13, 7, v2')
    e('v_lshl_add_u32 v12, v13, 4, v12')
    e('s_lshl_b32 s34, s59, 7')
    for i in range(4):
        e(f'buffer_load_dwordx4 v[{reg+4*i}:{reg+4*i+3}], v12, s[24:27], s34 offen nt')
        if i < 3: e(f's_add_u32 s34, s34, {8*1152}')
o_prefetch(2, 96)
e('s_sub_u32 s61, s2, 128')
e('s_cmp_lt_u32 s61, 32')
e('s_cbranch_scc0 L_C_not2')
e('s_add_u32 s61, s61, 256')
o_prefetch(61, 112)
lab('L_C_not2')
e('s_cmp_lg_u32 s3, 0')
e('s_cbranch_scc1 L_C_w3')
def em():
    e(f's_mov_b32 s34, {FLG_BP}')
poll_flags(em, 128, 12, 16)
lds_set(LF_BP, 12, 13)
lab('L_C_w3')
lds_wait(LF_BP, 12, 13)
e('s_lshr_b32 s33, s3, 2')
e('s_and_b32 s35, s3, 3')
e('s_lshl_b32 s34, s33, 6')
e('v_add_u32 v12, s34, v2')
e('v_lshlrev_b32 v12, 5, v12')
e('v_add_u32 v12, s42, v12')
e('v_lshlrev_b32 v12, 4, v12')
e('s_lshl_b32 s34, s35, 4')
e('v_add_u32 v15, s34, v3')
e('s_lshl_b32 s34, s33, 6')
e('v_add_u32 v13, s34, v15')
e('v_lshlrev_b32 v13, 5, v13')
e('v_add_u32 v13, s42, v13')
e('v_lshlrev_b32 v13, 11, v13')
e('v_lshl_add_u32 v13, v4, 4, v13')
e('s_lshl_b32 s34, s43, 8')
e(f's_add_u32 s34, s34, {BP}')
e(f's_mov_b32 s35, {BML}')
e(f's_add_u32 s36, s34, {4*32*2048}')
e(f's_add_u32 s37, s36, {4*32*2048}')
e(f's_add_u32 s38, s37, {4*32*2048}')
def loads():
    e(f'buffer_load_dwordx4 v[40:43], v12, {WSR}, s35 offen sc1')
    for i in range(4):
        e(f'buffer_load_dwordx4 v[{16+4*i}:{19+4*i}], v13, {WSR}, s{[34,36,37,38][i]} offen sc1')
tagged_loop(loads, [41, 43] + [16+4*k+1 for k in range(4)] + [16+4*k+3 for k in range(4)], 48, 49)
TS()
e('v_mov_b32 v44, v40')
e('s_nop 1')
row_reduce([44], 'max')
xrow_reduce([44], [45], 'max')
e('v_sub_f32 v40, v40, v44')
e('v_exp_f32 v40, v40')
e('s_nop 0')
e('v_mul_f32 v44, v40, v42')
e('s_nop 1')
row_reduce([44], 'add')
xrow_reduce([44], [45], 'add')
e('v_rcp_f32 v44, v44')
e('s_nop 0')
e('v_mul_f32 v40, v40, v44')
for i in range(4):
    e(f'v_add_u32 v45, {4*i}, v15')
    e('v_lshlrev_b32 v45, 2, v45')
    e(f'ds_bpermute_b32 v{48+i}, v45, v40')
e('s_waitcnt lgkmcnt(0)')
for k in range(4): e(f'v_mov_b32 v{52+k}, 0')
for i in range(4):
    for p in range(2):
        unpack(12, 13, 16+4*i+2*p)
        e(f'v_fmac_f32 v{52+2*p}, v{48+i}, v12')
        e(f'v_fmac_f32 v{53+2*p}, v{48+i}, v13')
xrow_reduce([52, 53, 54, 55], [56, 57, 58, 59], 'add')
VR = L_CKV
e('s_cmp_ge_u32 s2, 128')
e('s_cbranch_scc1 L_C_vr')
Lq = uid('ckw')
e('v_mov_b32 v12, %d' % (C_BAR + 4*6))
lab(Lq)
e('ds_read_b32 v13, v12'); e('s_waitcnt lgkmcnt(0)'); e('v_readfirstlane_b32 s32, v13'); e('s_nop 0')
e('s_cmp_ge_u32 s32, 8'); e(f's_cbranch_scc1 L_C_vr'); spin_guard(); e(f's_branch {Lq}')
lab('L_C_vr')
e('s_lshl_b32 s34, s3, 8')
e(f's_add_u32 s34, s34, {VR}')
e('v_lshlrev_b32 v12, 4, v4')
e('v_add_u32 v12, s34, v12')
e('ds_write_b128 v12, v[52:55]')
cbar(3, 12, 13)
e('s_lshl_b32 s34, s3, 3')
e('v_add_u32 v12, s34, v3')
e('v_lshlrev_b32 v12, 2, v12')
e(f'v_add_u32 v12, {VR}, v12')
for i in range(2):
    for b in range(2):
        for q in range(4):
            e(f'ds_read_b32 v{16+(i*2+b)*4+q}, v12 offset:{(b*4+q)*256+i*16}')
e('s_waitcnt lgkmcnt(0)')
for ib in range(4):
    for q in range(1, 4): e(f'v_add_f32 v{16+ib*4}, v{16+ib*4}, v{16+ib*4+q}')
for k in range(16): e(f'v_mov_b32 v{32+k}, 0')
for i in range(2):
    for j in range(4):
        unpack(12, 13, 64+4*i+j)
        for b in range(2):
            e(f'v_fmac_f32 v{32+8*b+2*j}, v{16+(i*2+b)*4}, v12')
            e(f'v_fmac_f32 v{32+8*b+2*j+1}, v{16+(i*2+b)*4}, v13')
xrow_reduce([32+k for k in range(16)], [48+k for k in range(16)], 'add')
e('s_lshl_b32 s34, s3, 10')
e(f's_add_u32 s34, s34, {VR+4096}')
e('v_lshlrev_b32 v12, 5, v4')
e('v_add_u32 v12, s34, v12')
e('s_mov_b64 exec, 0xffff')
e('ds_write_b128 v12, v[32:35]')
e('ds_write_b128 v12, v[36:39] offset:16')
e('ds_write_b128 v12, v[40:43] offset:512')
e('ds_write_b128 v12, v[44:47] offset:528')
e('s_mov_b64 exec, -1')
last_arriver(C_V, 8, 12, 13, 'L_C_vdone')
e('v_lshlrev_b32 v12, 4, v2')
e(f'v_add_u32 v13, {VR+4096}, v12')
for s in range(8): e(f'ds_read_b128 v[{16+4*s}:{19+4*s}], v13 offset:{s*1024}')
e('s_waitcnt lgkmcnt(0)')
for s in range(1, 8):
    for k in range(4): e(f'v_add_f32 v{16+k}, v{16+k}, v{16+4*s+k}')
e('s_lshl_b32 s34, s2, 11')
e(f's_add_u32 s34, s34, {CTXP}')
e('v_lshlrev_b32 v12, 5, v2')
store4tagged(16, 12, 34, 48)
set_flag(FLG_V, 2, 12)
lab('L_C_vdone')
TS()
def o_stage(st, reg, cnt, bark, LOV, LRD, lf):
    task_decode(st)
    Lb, Lj, Ld = uid('ob'), uid('oj'), uid('od')
    Lw, Lw2, Lp = uid('ow'), uid('ow2'), uid('op')
    e('s_cmp_lg_u32 s3, 0')
    e(f's_cbranch_scc1 {Lw}')
    e('s_cmp_eq_u32 s58, 0')
    e(f's_cbranch_scc0 {Lp}')
    for b in range(2):
        def em():
            e(f's_add_u32 s34, s60, {b*16}')
            e('s_lshl_b32 s34, s34, 10')
            e(f's_add_u32 s34, s34, {FLG_AP}')
        poll_flags(em, 8, 12, 16)
    e(f's_branch {Lw2}')
    lab(Lp)
    def em():
        e('s_lshl_b32 s34, s60, 11')
        e(f's_add_u32 s34, s34, {FLG_V}')
    poll_flags(em, 16, 12, 16)
    lab(Lw2)
    lds_set(lf, 12, 13)
    lab(Lw)
    lds_wait(lf, 12, 13)
    e('s_cmp_eq_u32 s58, 0')
    e(f's_cbranch_scc0 {Lb}')
    e('s_lshr_b32 s33, s3, 2')
    e('s_and_b32 s35, s3, 3')
    e('s_lshl_b32 s34, s33, 4')
    e('s_add_u32 s34, s34, s60')
    e('s_lshl_b32 s36, s34, 14')
    e('s_lshl_b32 s37, s35, 9')
    e('s_add_u32 s36, s36, s37')
    e(f's_add_u32 s36, s36, {AP}')
    e('v_lshlrev_b32 v12, 3, v2')
    e('s_add_u32 s37, s36, 4096'); e('s_add_u32 s38, s36, 8192'); e('s_add_u32 s32, s36, 12288')
    e('s_lshl_b32 s34, s34, 8')
    e('s_lshr_b32 s33, s35, 1')
    e('s_lshl_b32 s33, s33, 4')
    e('s_add_u32 s34, s34, s33')
    e(f's_add_u32 s34, s34, {AML}')
    e('v_mov_b32 v13, 0')
    def loads():
        for c in range(8):
            e(f'buffer_load_dwordx2 v[{16+2*c}:{17+2*c}], v12, {WSR}, s{[36,37,38,32][c//2]} offen offset:{(c%2)*2048} sc1')
        for c in range(8):
            e(f'buffer_load_dwordx4 v[{64+4*c - 32 if False else 32+4*c}:{35+4*c}], v13, {WSR}, s34 offen offset:{c*32} sc1')
    tagged_loop(loads, [17+2*c for c in range(8)] + [33+4*c for c in range(8)] + [35+4*c for c in range(8)], 14, 15)
    e('v_max_f32 v13, v32, v36')
    for c in range(2, 8): e(f'v_max_f32 v13, v13, v{32+4*c}')
    for c in range(8): e(f'v_sub_f32 v{32+4*c}, v{32+4*c}, v13')
    for c in range(8): e(f'v_exp_f32 v{32+4*c}, v{32+4*c}')
    e('v_mov_b32 v14, 0'); e('v_mov_b32 v15, 0')
    for c in range(8):
        e(f'v_fmac_f32 v14, v{32+4*c}, v{34+4*c}')
        e(f'v_fmac_f32 v15, v{32+4*c}, v{16+2*c}')
    e('v_rcp_f32 v14, v14')
    e('s_nop 0')
    e('v_mul_f32 v15, v15, v14')
    e(f's_branch {Lj}')
    lab(Lb)
    e('s_lshr_b32 s33, s3, 2')
    e('s_and_b32 s35, s3, 3')
    e('s_lshr_b32 s37, s35, 1')
    e('s_lshl_b32 s34, s60, 1')
    e('s_add_u32 s34, s34, s37')
    e('s_lshl_b32 s36, s34, 14')
    e('s_lshl_b32 s37, s33, 10')
    e('s_add_u32 s36, s36, s37')
    e('s_and_b32 s37, s35, 1')
    e('s_lshl_b32 s37, s37, 9')
    e('s_add_u32 s36, s36, s37')
    e(f's_add_u32 s36, s36, {CTXP}')
    e('v_lshlrev_b32 v12, 3, v2')
    e('s_add_u32 s37, s36, 4096'); e('s_add_u32 s38, s36, 8192'); e('s_add_u32 s32, s36, 12288')
    def loads():
        for c in range(8):
            e(f'buffer_load_dwordx2 v[{16+2*c}:{17+2*c}], v12, {WSR}, s{[36,37,38,32][c//2]} offen offset:{(c%2)*2048} sc1')
    tagged_loop(loads, [17+2*c for c in range(8)], 14, 15)
    e('v_mov_b32 v15, v16')
    for c in range(1, 8): e(f'v_add_f32 v15, v15, v{16+2*c}')
    lab(Lj)
    e('v_cvt_pk_bf16_f32 v15, v15, v15')
    e('v_lshlrev_b32 v15, 16, v15')
    e('s_lshl_b32 s34, s3, 8')
    e(f's_add_u32 s34, s34, {LOV}')
    e('v_lshlrev_b32 v12, 2, v2')
    e('v_add_u32 v12, s34, v12')
    e('ds_write_b32 v12, v15')
    cbar(bark, 12, 13)
    e('s_lshl_b32 s34, s3, 5')
    e('v_lshrrev_b32 v12, 3, v2')
    e('v_add_u32 v12, s34, v12')
    e('v_lshlrev_b32 v12, 2, v12')
    e(f'v_add_u32 v12, {LOV}, v12')
    for i in range(4):
        for b in range(2):
            e(f'ds_read_b32 v{16+2*i+b}, v12 offset:{b*1024+i*32}')
    for k in range(16): e(f'v_mov_b32 v{32+k}, 0')
    e('s_waitcnt vmcnt(0) lgkmcnt(0)')
    for i in range(4):
        for j in range(4):
            unpack(12, 13, reg+4*i+j)
            for b in range(2):
                e(f'v_fmac_f32 v{32+8*b+2*j}, v{16+2*i+b}, v12')
                e(f'v_fmac_f32 v{32+8*b+2*j+1}, v{16+2*i+b}, v13')
    for k in range(16): e(f'v_add_f32_dpp v{32+k}, v{32+k}, v{32+k} row_ror:8 row_mask:0xf bank_mask:0xf')
    xrow_reduce([32+k for k in range(16)], [48+k for k in range(16)], 'add')
    e('s_lshl_b32 s34, s3, 9')
    e(f's_add_u32 s34, s34, {LRD}')
    e('v_lshlrev_b32 v12, 5, v2')
    e('v_add_u32 v12, s34, v12')
    e('s_mov_b64 exec, 0xff')
    e('ds_write_b128 v12, v[32:35]')
    e('ds_write_b128 v12, v[36:39] offset:16')
    e('ds_write_b128 v12, v[40:43] offset:256')
    e('ds_write_b128 v12, v[44:47] offset:272')
    e('s_mov_b64 exec, -1')
    last_arriver(cnt, 8, 12, 13, Ld)
    e('v_lshlrev_b32 v12, 3, v2')
    e(f'v_add_u32 v13, {LRD}, v12')
    for s in range(8): e(f'ds_read_b64 v[{16+2*s}:{17+2*s}], v13 offset:{s*512}')
    e('s_waitcnt lgkmcnt(0)')
    for s in range(1, 8):
        e(f'v_add_f32 v16, v16, v{16+2*s}'); e(f'v_add_f32 v17, v17, v{17+2*s}')
    e('v_mov_b32 v18, v17'); e(f'v_mov_b32 v17, s{STAG}'); e(f'v_mov_b32 v19, s{STAG}')
    e(f's_lshl_b32 s34, s{st}, 10')
    e(f's_add_u32 s34, s34, {OUTP}')
    e('v_lshlrev_b32 v12, 4, v2')
    e(f'buffer_store_dwordx4 v[16:19], v12, {WSR}, s34 offen sc1')
    set_flag(FLG_O, st, 12)
    lab(Ld)
OSC = L_CKV + 16384
o_stage(2, 96, C_O, 4, L_OV, OSC, LF_O0)
TS()
e('s_sub_u32 s61, s2, 128')
e('s_cmp_lt_u32 s61, 32')
e('s_cbranch_scc0 L_C_not2b')
e('s_add_u32 s61, s61, 256')
o_stage(61, 112, C_O2, 5, L_OV+2048, OSC+4096, LF_O1)
lab('L_C_not2b')
e('s_sub_u32 s61, s2, 240')
e('s_cmp_lt_u32 s61, 9')
e('s_cbranch_scc0 L_C_end')
e('s_cmp_eq_u32 s3, 7')
e('s_cbranch_scc0 L_C_end')
srd(20, 98, 1152); srd(24, 100, 2304)
e('v_lshlrev_b32 v12, 1, v2')
for k in range(9):
    e(f'buffer_load_ushort v{16+k}, v12, s[20:23], 0 offen offset:{k*128}')
    e(f'buffer_load_ushort v{32+k}, v12, s[{S_X}:{S_X+3}], 0 offen offset:{k*128}')
    e(f'buffer_load_ushort v{48+k}, v12, s[{S_X}:{S_X+3}], 0 offen offset:{k*128+1152}')
e('s_waitcnt vmcnt(0)')
e('v_mov_b32 v60, 0'); e('v_mov_b32 v61, 0')
for k in range(9):
    e(f'v_lshlrev_b32 v{16+k}, 16, v{16+k}')
    e(f'v_lshlrev_b32 v{32+k}, 16, v{32+k}')
    e(f'v_lshlrev_b32 v{48+k}, 16, v{48+k}')
    e(f'v_mul_f32 v{32+k}, v{32+k}, v{16+k}')
    e(f'v_mul_f32 v{48+k}, v{48+k}, v{16+k}')
    e(f'v_cvt_pk_bf16_f32 v62, v{32+k}, v{48+k}')
    unpack(63, 64, 62)
    e('v_add_f32 v60, v60, v63'); e('v_add_f32 v61, v61, v64')
e('s_nop 1')
row_reduce([60, 61], 'add')
xrow_reduce([60, 61], [62, 63], 'add')
e('v_cvt_pk_bf16_f32 v62, v60, v61')
unpack(60, 61, 62)
e(f's_mov_b32 s33, {f32hex(-1.4426950408889634)}')
e('v_mul_f32 v60, s33, v60'); e('v_mul_f32 v61, s33, v61')
e('v_exp_f32 v60, v60'); e('v_exp_f32 v61, v61'); e('s_nop 0')
e('v_add_f32 v60, 1.0, v60'); e('v_add_f32 v61, 1.0, v61')
e('v_rcp_f32 v60, v60'); e('v_rcp_f32 v61, v61'); e('s_nop 0')
e('v_cvt_pk_bf16_f32 v62, v60, v61')
unpack(60, 61, 62)
e('v_cmp_le_u32 vcc, 32, v2'); e('s_nop 1')
e('v_cndmask_b32 v60, v60, v61, vcc')
for m in range(2):
    def em():
        e('s_lshl_b32 s34, s61, 11')
        e(f's_add_u32 s34, s34, {FLG_O + m*144*128}')
    poll_flags(em, 16, 12, 16)
e('v_lshlrev_b32 v12, 4, v2')
e('s_lshl_b32 s34, s61, 14')
e(f's_add_u32 s34, s34, {OUTP}')
for q in range(1, 4): e(f's_add_u32 s{34+q}, s34, {q*4096}')
e(f's_add_u32 s50, s34, {144*1024}')
for q in range(1, 4): e(f's_add_u32 s{50+q}, s50, {q*4096}')
acc_init = [True]
for m in range(2):
    base = 34 if m == 0 else 50
    def loads():
        for t in range(16):
            e(f'buffer_load_dwordx4 v[{64+4*t if t<16 else 0}:{67+4*t}], v12, {WSR}, s{base+t//4} offen offset:{(t%4)*1024} sc1')
    tagged_loop(loads, [64+4*t+1 for t in range(16)] + [64+4*t+3 for t in range(16)], 14, 15)
    d = 16 + 2*m
    e(f'v_mov_b32 v{d}, v64'); e(f'v_mov_b32 v{d+1}, v66')
    for t in range(1, 16):
        e(f'v_add_f32 v{d}, v{d}, v{64+4*t}'); e(f'v_add_f32 v{d+1}, v{d+1}, v{66+4*t}')
e('v_cvt_pk_bf16_f32 v62, v16, v17'); unpack(16, 17, 62)
e('v_cvt_pk_bf16_f32 v62, v18, v19'); unpack(18, 19, 62)
e('v_sub_f32 v61, 1.0, v60')
e('v_cvt_pk_bf16_f32 v62, v61, v61'); e('v_lshlrev_b32 v61, 16, v62')
e('v_mul_f32 v16, v60, v16'); e('v_mul_f32 v17, v60, v17')
e('v_cvt_pk_bf16_f32 v62, v16, v17'); unpack(16, 17, 62)
e('v_mul_f32 v18, v61, v18'); e('v_mul_f32 v19, v61, v19')
e('v_cvt_pk_bf16_f32 v62, v18, v19'); unpack(18, 19, 62)
e('v_add_f32 v16, v16, v18'); e('v_add_f32 v17, v17, v19')
e('v_cvt_pk_bf16_f32 v62, v16, v17')
e('v_lshrrev_b32 v12, 5, v2')
e('v_mul_u32_u24 v12, 1152, v12')
e('v_and_b32 v13, 31, v2')
e('v_lshl_add_u32 v12, v13, 2, v12')
e('s_lshl_b32 s34, s61, 7')
e('buffer_store_dword v62, v12, s[24:27], s34 offen')
lab('L_C_end')
TS()
ts_dump()
e('s_endpgm')
lab('L_bail')
e('s_endpgm')
lab('L_exit')
e('s_endpgm')
out += ['.section .rodata,"a"', '.p2align 6', f'.amdhsa_kernel {NAME}', '  .amdhsa_next_free_vgpr 128', '  .amdhsa_next_free_sgpr 102',
  '  .amdhsa_accum_offset 128', '  .amdhsa_group_segment_fixed_size 0', '  .amdhsa_kernarg_size 120', '  .amdhsa_user_sgpr_count 2',
  '  .amdhsa_user_sgpr_kernarg_segment_ptr 1', '  .amdhsa_system_sgpr_workgroup_id_x 1', '.end_amdhsa_kernel']
open(sys.argv[1], 'w').write(HEADER + f'; @launch grid=(256,1,1) block=(1024,1,1) lds={(L_END+255)//256*256}\n' + '\n'.join(out) + '\n')
print('LDS', L_END, 'stamps', nA, ts_n[0])
```

```python
import sys, struct, re, os

REF = open('gated_mix__gqa_block_cached__compressed_kv_cla__decode.s.ref').read()
HEADER = REF.split('; Override')[0]
NAME = 'gated_mix__gqa_block_cached__compressed_kv_cla__decode_kernel'
TSTAMP = int(os.environ.get('TSTAMP', '0'))
KDEPTH = int(os.environ.get('KDEPTH', '4'))
VDEPTH = int(os.environ.get('VDEPTH', '4'))
QLW = int(os.environ.get('QLW', '1'))
NOA = int(os.environ.get('NOA', '0'))
SLEEP = int(os.environ.get('SLEEP', '2'))

FLG_Q, FLG_U, FLG_BP, FLG_V, FLG_AP, FLG_O = [0xC00000 + k*0x10000 for k in range(6)]
FS = 7
QP   = 0x010000
QABS = 0x090000
AP   = 0x0B0000
AML  = 0x130000
BML  = 0x140000
CTXP = 0x150000
OUTP = 0x1D0000
TSB  = 0x280000
BP   = 0x400000
WS_USED = 0xD00000

CSC = 0.08838834764831845 * 1.4426950408889634
def f32hex(x): return '0x%08x' % struct.unpack('<I', struct.pack('<f', x))[0]

out = []
def e(s):
    m = re.search(r'offset:(\d+)', s)
    if m and s.startswith('buffer_'): assert int(m.group(1)) < 4096, s
    if m and s.startswith('ds_') and 'swizzle' not in s: assert int(m.group(1)) < 65536, s
    out.append('  ' + s)
def lab(s): out.append(s + ':')
_uid = [0]
def uid(p):
    _uid[0] += 1
    return f'L_{p}_{_uid[0]}'

KA = dict(A_x=0, A_k=8, A_v=16, A_wq=24, A_wo=32, B_x=40, B_ckv=48, B_wq=56, B_wuk=64, B_wuv=72, B_wo=80, gate=88, out=96, dbg=104, ws=112)

def srd(s, plo, nbytes):
    e(f's_mov_b32 s{s}, s{plo}')
    e(f's_and_b32 s{s+1}, s{plo+1}, 0xffff')
    e(f's_mov_b32 s{s+2}, {nbytes}')
    e(f's_mov_b32 s{s+3}, 0x20000')

def unpack(lo, hi, src):
    e(f'v_lshlrev_b32 v{lo}, 16, v{src}')
    e(f'v_and_b32 v{hi}, 0xffff0000, v{src}')

def row_reduce(regs, op='add'):
    for sh in (8, 4, 2, 1):
        for r in regs:
            e(f'v_{op}_f32_dpp v{r}, v{r}, v{r} row_ror:{sh} row_mask:0xf bank_mask:0xf')
        if len(regs) < 3: e('s_nop 1')

def xrow_reduce(regs, tmp, op='add'):
    for r, t in zip(regs, tmp): e(f'v_mov_b32 v{t}, v{r}')
    if len(regs) < 3: e('s_nop 1')
    for r, t in zip(regs, tmp): e(f'v_permlane16_swap_b32 v{r}, v{t}')
    if len(regs) < 3: e('s_nop 1')
    for r, t in zip(regs, tmp): e(f'v_{op}_f32 v{r}, v{r}, v{t}')
    for r, t in zip(regs, tmp): e(f'v_mov_b32 v{t}, v{r}')
    if len(regs) < 3: e('s_nop 1')
    for r, t in zip(regs, tmp): e(f'v_permlane32_swap_b32 v{r}, v{t}')
    if len(regs) < 3: e('s_nop 1')
    for r, t in zip(regs, tmp): e(f'v_{op}_f32 v{r}, v{r}, v{t}')

S_WS, S_DBG, S_X = 4, 8, 12
WSR = f's[{S_WS}:{S_WS+3}]'
STAG = 39
ts_n = [0]
def TS():
    if TSTAMP:
        k = ts_n[0]; ts_n[0] += 1
        assert k < 10
        e(f's_memrealtime s[{64+2*k}:{65+2*k}]')

def ts_dump():
    if not TSTAMP: return
    e('s_waitcnt lgkmcnt(0)')
    e('s_lshl_b32 s32, s2, 4'); e('s_add_u32 s32, s32, s63'); e('s_lshl_b32 s32, s32, 7'); e(f's_add_u32 s32, s32, {TSB}')
    e('s_mov_b64 exec, 1')
    e('v_mov_b32 v2, 0')
    for k in range(ts_n[0]):
        e(f'v_mov_b32 v4, s{64+2*k}'); e(f'v_mov_b32 v5, s{65+2*k}')
        e(f'buffer_store_dwordx2 v[4:5], v2, {WSR}, s32 offen offset:{k*8}')
        e('s_nop 1')
    e('s_mov_b64 exec, -1')

C_Q, C_U, C_BP, C_V, C_A, C_O, C_O2 = 0, 4, 8, 12, 16, 20, 24
C_BAR = 64
L_FLG = 128
L_QA   = 256
L_QB   = L_QA + 512
L_UO   = L_QB + 1024
L_BST  = L_UO + 256
L_AML  = L_BST + 256
L_AO   = L_AML + 256
L_P    = L_AO + 8192
L_OV   = L_P + 4608
L_RED  = L_OV + 4096
QS = 1040
L_QABS = L_RED + 24576
L_S    = L_QABS + 32*QS
L_CKV  = L_S + 8192
RS = 1056
L_END  = L_CKV + 64*RS
assert L_END <= 163840, L_END
L_BPS = L_RED
assert L_S + 8192 - L_RED >= 65536

def spin_guard():
    e('s_add_u32 s62, s62, 1')
    e('s_cmp_gt_u32 s62, 0x1000000')
    e('s_cbranch_scc1 L_bail')

def cbar(k, va, vt, st=32):
    L = uid('cbar')
    e('s_waitcnt lgkmcnt(0)')
    e(f'v_mov_b32 v{va}, {C_BAR + 4*k}')
    e(f'v_mov_b32 v{vt}, 1')
    e('s_mov_b64 exec, 1')
    e(f'ds_add_u32 v{va}, v{vt}')
    e('s_mov_b64 exec, -1')
    lab(L)
    e(f'ds_read_b32 v{vt}, v{va}')
    e('s_waitcnt lgkmcnt(0)')
    e(f'v_readfirstlane_b32 s{st}, v{vt}')
    e('s_nop 0')
    e(f's_cmp_ge_u32 s{st}, 8')
    e(f's_cbranch_scc1 {L}_d')
    spin_guard()
    e('s_sleep 0')
    e(f's_branch {L}')
    lab(L + '_d')

def lds_wait(idx, va, vt, st=32):
    L = uid('lw')
    e(f'v_mov_b32 v{va}, {L_FLG + 4*idx}')
    lab(L)
    e(f'ds_read_b32 v{vt}, v{va}')
    e('s_waitcnt lgkmcnt(0)')
    e(f'v_readfirstlane_b32 s{st}, v{vt}')
    e('s_nop 0')
    e(f's_cmp_lg_u32 s{st}, 0')
    e(f's_cbranch_scc1 {L}_d')
    spin_guard()
    e('s_sleep 1')
    e(f's_branch {L}')
    lab(L + '_d')

def lds_set(idx, va, vt):
    e('s_waitcnt lgkmcnt(0)')
    e(f'v_mov_b32 v{va}, {L_FLG + 4*idx}')
    e(f'v_mov_b32 v{vt}, 1')
    e(f'ds_write_b32 v{va}, v{vt}')

def last_arriver(cnt, n, va, vt, skip_label, st=32):
    e('s_waitcnt lgkmcnt(0)')
    e(f'v_mov_b32 v{va}, {cnt}')
    e(f'v_mov_b32 v{vt}, 1')
    e('s_mov_b64 exec, 1')
    e(f'ds_add_rtn_u32 v{vt}, v{va}, v{vt}')
    e('s_waitcnt lgkmcnt(0)')
    e('s_mov_b64 exec, -1')
    e(f'v_readfirstlane_b32 s{st}, v{vt}')
    e('s_nop 0')
    e(f's_cmp_lg_u32 s{st}, {n-1}')
    e(f's_cbranch_scc1 {skip_label}')

L_TAG = 192
def master_get_tag(vt, va):
    L = uid('tag')
    lab(L)
    e(f'v_mov_b32 v{vt}, 0')
    e(f'buffer_load_dword v{vt}, v{vt}, s[{S_DBG}:{S_DBG+3}], 0 offen sc1')
    e('s_waitcnt vmcnt(0)')
    e(f'v_readfirstlane_b32 s{STAG}, v{vt}')
    spin_guard()
    e(f's_cmp_lg_u32 s{STAG}, 0')
    e(f's_cbranch_scc1 {L}_d')
    e('s_sleep 2')
    e(f's_branch {L}')
    lab(L + '_d')
    e(f'v_mov_b32 v{va}, {L_TAG}')
    e(f'ds_write_b32 v{va}, v{vt}')

def get_tag(vt):
    L = uid('tag')
    lab(L)
    e(f'v_mov_b32 v{vt}, {L_TAG}')
    e(f'ds_read_b32 v{vt}, v{vt}')
    e('s_waitcnt lgkmcnt(0)')
    e(f'v_readfirstlane_b32 s{STAG}, v{vt}')
    spin_guard()
    e(f's_cmp_lg_u32 s{STAG}, 0')
    e(f's_cbranch_scc1 {L}_d')
    e('s_sleep 1')
    e(f's_branch {L}')
    lab(L + '_d')

def set_flag(flg_off, idx_sgpr, vt):
    e(f's_lshl_b32 s33, s{idx_sgpr}, {FS}')
    e(f's_add_u32 s33, s33, {flg_off}')
    e(f'v_mov_b32 v{vt}, 0')
    e(f'v_mov_b32 v{vt+1}, s{STAG}')
    e('s_mov_b64 exec, 1')
    e(f'buffer_store_dword v{vt+1}, v{vt}, {WSR}, s33 offen sc1')
    e('s_mov_b64 exec, -1')

def poll_flags(soff_expr_emit, nflags, vaddr, vf):
    L = uid('poll')
    soff_expr_emit()
    per = (nflags + 63) // 64
    nl = min(nflags, 64)
    e(f'v_lshlrev_b32 v{vaddr}, {FS}, v2')
    if nl < 64: e(f's_mov_b64 exec, {hex((1 << nl) - 1)}')
    for j in range(1, per): e(f's_add_u32 s{50+j}, s34, {j*64*128}')
    lab(L)
    for j in range(per):
        e(f'buffer_load_dword v{vf+j}, v{vaddr}, {WSR}, s{34 if j == 0 else 50+j} offen sc1')
    e('s_waitcnt vmcnt(0)')
    e(f'v_cmp_ne_u32 vcc, s{STAG}, v{vf}')
    for j in range(1, per):
        e(f'v_cmp_ne_u32 s[36:37], s{STAG}, v{vf+j}')
        e('s_or_b64 vcc, vcc, s[36:37]')
    e(f's_cbranch_vccz {L}_d')
    spin_guard()
    e(f's_sleep {SLEEP}')
    e(f's_branch {L}')
    lab(L + '_d')
    e('s_mov_b64 exec, -1')

def tagged_loop(emit_loads, tag_regs, vmin, vmax, mask=None):
    L = uid('tl')
    lab(L)
    emit_loads()
    e('s_waitcnt vmcnt(0)')
    tr = list(tag_regs)
    e(f'v_mov_b32 v{vmin}, s{STAG}')
    e(f'v_mov_b32 v{vmax}, s{STAG}')
    while tr:
        if len(tr) >= 2:
            a, b = tr.pop(0), tr.pop(0)
            e(f'v_min3_u32 v{vmin}, v{vmin}, v{a}, v{b}')
            e(f'v_max3_u32 v{vmax}, v{vmax}, v{a}, v{b}')
        else:
            a = tr.pop(0)
            e(f'v_min_u32 v{vmin}, v{vmin}, v{a}')
            e(f'v_max_u32 v{vmax}, v{vmax}, v{a}')
    e(f'v_cmp_ne_u32 vcc, v{vmin}, v{vmax}')
    e(f's_cbranch_vccz {L}_d')
    spin_guard()
    e(f's_sleep {SLEEP}')
    e(f's_branch {L}')
    lab(L + '_d')

LF_Q, LF_U, LF_BP, LF_O0, LF_O1 = 0, 1, 2, 3, 4

out += ['.amdgcn_target "amdgcn-amd-amdhsa--gfx950"', '.text', f'.globl {NAME}', '.p2align 8', f'.type {NAME},@function']
lab(NAME)
e('s_cmp_ge_u32 s2, 256')
e('s_cbranch_scc1 L_exit')
TS()
e(f's_load_dwordx4 s[44:47], s[0:1], {KA["dbg"]}')
e(f's_load_dwordx2 s[48:49], s[0:1], {KA["A_x"]}')
e('v_lshrrev_b32 v1, 6, v0')
e('v_and_b32 v2, 63, v0')
e('v_readfirstlane_b32 s3, v1')
e('v_lshrrev_b32 v3, 4, v2')
e('v_and_b32 v4, 15, v2')
e(f's_mov_b32 s40, {f32hex(CSC)}')
e('s_mov_b32 s63, s3')
e('s_mov_b32 s62, 0')
e('s_cmp_ge_u32 s3, 8')
e('s_cbranch_scc1 L_C')

e(f's_load_dwordx4 s[52:55], s[0:1], {KA["A_k"]}')
e('s_waitcnt lgkmcnt(0)')
srd(S_WS, 46, WS_USED); srd(S_DBG, 44, 256)
srd(16, 52, 33554432); srd(20, 54, 33554432)
e('s_lshl_b32 s32, s2, 17')
e('s_lshl_b32 s33, s3, 14')
e('s_add_u32 s32, s32, s33')
e('v_lshlrev_b32 v5, 8, v3')
e('v_lshl_add_u32 v5, v4, 4, v5')
e('v_add_u32 v5, s32, v5')
e('s_mov_b32 s44, 0'); e('s_mov_b32 s45, 4096'); e('s_mov_b32 s46, 8192'); e('s_mov_b32 s47, 12288')
KB = 64
def kload(i, srdn):
    if NOA: return
    e(f'buffer_load_dwordx4 v[{KB+4*i}:{KB+4*i+3}], v5, s[{srdn}:{srdn+3}], s{44+i//4} offen offset:{(i%4)*1024} nt')
e('s_cmp_lg_u32 s3, 0')
e('s_cbranch_scc1 L_A_noinit')
e('v_lshlrev_b32 v6, 2, v2')
e('v_mov_b32 v7, 0')
e('ds_write_b32 v6, v7')
e('s_waitcnt lgkmcnt(0)')
lab('L_A_noinit')
e('s_barrier')
if QLW:
    Lq = uid('qlw')
    e('v_mov_b32 v6, 28')
    lab(Lq)
    e('ds_read_b32 v7, v6'); e('s_waitcnt lgkmcnt(0)'); e('v_readfirstlane_b32 s32, v7'); e('s_nop 0')
    e('s_cmp_ge_u32 s32, 8'); e(f's_cbranch_scc1 {Lq}_d'); spin_guard(); e('s_sleep 1'); e(f's_branch {Lq}')
    lab(Lq + '_d')
for i in range(16):
    if i >= KDEPTH: e(f's_waitcnt vmcnt({KDEPTH-1})')
    kload(i, 16)
TS()
get_tag(6)
lds_wait(LF_Q, 6, 7)
TS()
e(f'v_lshlrev_b32 v10, 4, v4')
e(f'ds_read_b128 v[48:51], v10 offset:{L_QA}')
e(f'ds_read_b128 v[52:55], v10 offset:{L_QA+256}')
for k in range(32): e(f'v_mov_b32 v{16+k}, 0')
e('s_waitcnt vmcnt(0) lgkmcnt(0)')
for i in range(16):
    for j in range(4):
        for hq in range(2):
            e(f'v_dot2c_f32_bf16 v{16+2*i+hq}, v{KB+4*i+j}, v{48+4*hq+j}')
for i in range(VDEPTH): kload(i, 20)
TS()
e('s_nop 3')
row_reduce([16+k for k in range(32)])
for hq in range(2):
    e(f'v_max_f32 v{56+hq}, v{16+hq}, v{18+hq}')
    for i in range(2, 16):
        e(f'v_max_f32 v{56+hq}, v{56+hq}, v{16+2*i+hq}')
xrow_reduce([56, 57], [58, 59], 'max')
for hq in range(2):
    e(f'v_mul_f32 v{56+hq}, s40, v{56+hq}')
for i in range(16):
    for hq in range(2):
        e(f'v_fma_f32 v{16+2*i+hq}, v{16+2*i+hq}, s40, -v{56+hq}')
for k in range(32): e(f'v_exp_f32 v{16+k}, v{16+k}')
e('s_nop 0')
for hq in range(2):
    e(f'v_add_f32 v{58+hq}, v{16+hq}, v{18+hq}')
    for i in range(2, 16):
        e(f'v_add_f32 v{58+hq}, v{58+hq}, v{16+2*i+hq}')
xrow_reduce([58, 59], [60, 61], 'add')
AC = 48
e('v_mov_b32 v10, v56'); e('v_mov_b32 v11, v58'); e('v_mov_b32 v12, v57'); e('v_mov_b32 v13, v59')
for k in range(16): e(f'v_mov_b32 v{AC+k}, 0')
for i in range(16):
    nissued = min(16, i + VDEPTH)
    e(f's_waitcnt vmcnt({nissued - i - 1})')
    for j in range(4):
        unpack(14, 15, KB+4*i+j)
        for hq in range(2):
            e(f'v_fmac_f32 v{AC+hq*8+2*j}, v{16+2*i+hq}, v14')
            e(f'v_fmac_f32 v{AC+hq*8+2*j+1}, v{16+2*i+hq}, v15')
    if i + VDEPTH < 16: kload(i + VDEPTH, 20)
TS()
xrow_reduce([AC+k for k in range(16)], [64+k for k in range(16)], 'add')
e('s_lshl_b32 s37, s3, 10')
e('v_lshlrev_b32 v7, 5, v4')
e('v_add_u32 v7, s37, v7')
e('s_lshl_b32 s37, s3, 4')
e('v_mov_b32 v6, s37')
e('s_mov_b64 exec, 0xffff')
e(f'ds_write_b128 v7, v[{AC}:{AC+3}] offset:{L_AO}')
e(f'ds_write_b128 v7, v[{AC+4}:{AC+7}] offset:{L_AO+16}')
e(f'ds_write_b128 v7, v[{AC+8}:{AC+11}] offset:{L_AO+512}')
e(f'ds_write_b128 v7, v[{AC+12}:{AC+15}] offset:{L_AO+528}')
e(f'ds_write_b128 v6, v[10:13] offset:{L_AML}')
e('s_mov_b64 exec, -1')
last_arriver(C_A, 8, 6, 7, 'L_A_done')
e('v_lshrrev_b32 v6, 5, v2')
e('v_lshlrev_b32 v7, 3, v6')
for s in range(8):
    e(f'ds_read_b64 v[{64+2*s}:{65+2*s}], v7 offset:{L_AML+s*16}')
e('v_lshlrev_b32 v9, 4, v2')
for s in range(8):
    e(f'ds_read_b128 v[{20+4*s}:{23+4*s}], v9 offset:{L_AO+s*1024}')
e('s_waitcnt lgkmcnt(0)')
e('v_max_f32 v12, v64, v66')
for s in range(2, 8): e(f'v_max_f32 v12, v12, v{64+2*s}')
for s in range(8): e(f'v_sub_f32 v{64+2*s}, v{64+2*s}, v12')
for s in range(8): e(f'v_exp_f32 v{64+2*s}, v{64+2*s}')
e('v_mov_b32 v13, 0')
for k in range(4): e(f'v_mov_b32 v{16+k}, 0')
for s in range(8):
    e(f'v_fmac_f32 v13, v{64+2*s}, v{65+2*s}')
    for k in range(4): e(f'v_fmac_f32 v{16+k}, v{64+2*s}, v{20+4*s+k}')
e(f'v_mov_b32 v24, v16'); e(f'v_mov_b32 v25, s{STAG}'); e('v_mov_b32 v26, v17'); e(f'v_mov_b32 v27, s{STAG}')
e(f'v_mov_b32 v28, v18'); e(f'v_mov_b32 v29, s{STAG}'); e('v_mov_b32 v30, v19'); e(f'v_mov_b32 v31, s{STAG}')
e('s_lshl_b32 s34, s2, 11')
e(f's_add_u32 s34, s34, {AP}')
e('v_lshlrev_b32 v9, 5, v2')
e(f'buffer_store_dwordx4 v[24:27], v9, {WSR}, s34 offen sc1')
e(f'buffer_store_dwordx4 v[28:31], v9, {WSR}, s34 offen offset:16 sc1')
e('s_nop 1')
e('v_mov_b32 v24, v12'); e('v_mov_b32 v26, v13')
e('s_lshl_b32 s34, s2, 5')
e(f's_add_u32 s34, s34, {AML}')
e('v_lshlrev_b32 v7, 4, v6')
e('v_and_b32 v6, 31, v2')
e('v_cmp_eq_u32 vcc, 0, v6')
e('s_and_saveexec_b64 s[36:37], vcc')
e(f'buffer_store_dwordx4 v[24:27], v7, {WSR}, s34 offen sc1')
e('s_mov_b64 exec, s[36:37]')
set_flag(FLG_AP, 2, 6)
lab('L_A_done')
TS()
e('s_sub_u32 s61, s2, 128')
e('s_cmp_lt_u32 s61, 32')
e('s_cbranch_scc1 L_A_tail')
ts_dump()
e('s_endpgm')
nA = ts_n[0]

lab('L_C')
ts_n[0] = 1
e('s_setprio 2')
e(f's_load_dwordx4 s[84:87], s[0:1], {KA["A_wq"]}')
e(f's_load_dwordx8 s[88:95], s[0:1], {KA["B_ckv"]}')
e(f's_load_dwordx4 s[96:99], s[0:1], {KA["B_wo"]}')
e(f's_load_dwordx2 s[100:101], s[0:1], {KA["out"]}')
assert not TSTAMP or True
e('s_sub_u32 s3, s3, 8')
e('s_waitcnt lgkmcnt(0)')
srd(S_WS, 46, WS_USED); srd(S_DBG, 44, 256); srd(S_X, 48, 2304)
e('s_lshr_b32 s32, s2, 7')
e('s_cmp_eq_u32 s32, 0')
e('s_cselect_b32 s50, s84, s90')
e('s_cselect_b32 s51, s85, s91')
srd(16, 50, 4718592)
srd(20, 92, 4194304)
srd(24, 88, 8388608)
e('s_or_b32 s32, s2, s3')
e('s_cmp_lg_u32 s32, 0')
e('s_cbranch_scc1 L_C_notag')
e('s_memrealtime s[60:61]')
e('s_waitcnt lgkmcnt(0)')
e('s_or_b32 s60, s60, 1')
e('v_mov_b32 v6, 0')
e('v_mov_b32 v7, s60')
e('s_mov_b64 exec, 1')
e(f'buffer_store_dword v7, v6, s[{S_DBG}:{S_DBG+3}], 0 offen sc1')
e('s_mov_b64 exec, -1')
lab('L_C_notag')
e('s_and_b32 s33, s2, 3')
e('s_mul_i32 s33, s33, 144')
e('s_mul_i32 s34, s3, 18')
e('s_add_u32 s33, s33, s34')
e('v_lshrrev_b32 v5, 5, v2')
e('v_add_u32 v5, s33, v5')
e('v_lshlrev_b32 v7, 1, v5')
e('s_bfe_u32 s35, s2, 0x50002')
e('s_lshl_b32 s35, s35, 8')
e('v_lshlrev_b32 v6, 13, v5')
e('v_and_b32 v8, 31, v2')
e('v_lshl_add_u32 v6, v8, 3, v6')
e('v_add_u32 v6, s35, v6')
e('s_mov_b32 s36, 0')
for i in range(9):
    e(f'buffer_load_dwordx2 v[{16+2*i}:{17+2*i}], v6, s[16:19], s36 offen nt')
    if i < 8: e('s_add_u32 s36, s36, 16384')
for i in range(9):
    for b in range(2):
        e(f'buffer_load_ushort v{40+2*i+b}, v7, s[{S_X}:{S_X+3}], 0 offen offset:{i*4+b*1152}')
e('s_lshr_b32 s42, s2, 3')
e('s_and_b32 s43, s2, 7')
e('s_lshl_b32 s33, s43, 6')
e('s_lshl_b32 s34, s3, 3')
e('s_add_u32 s33, s33, s34')
e('v_add_u32 v9, s33, v3')
e('v_lshlrev_b32 v10, 13, v9')
e('s_lshl_b32 s34, s42, 8')
e('v_lshl_add_u32 v10, v4, 4, v10')
e('v_add_u32 v10, s34, v10')
e('s_mov_b32 s36, 32768')
e('buffer_load_dwordx4 v[64:67], v10, s[20:23], 0 offen nt')
e('buffer_load_dwordx4 v[68:71], v10, s[20:23], s36 offen nt')
e('s_barrier')
e('s_cmp_lg_u32 s3, 0')
e('s_cbranch_scc1 L_C_nt')
master_get_tag(12, 13)
lab('L_C_nt')
e('s_waitcnt vmcnt(2)')
if QLW:
    e('v_mov_b32 v12, 28'); e('v_mov_b32 v13, 1'); e('s_mov_b64 exec, 1'); e('ds_add_u32 v12, v13'); e('s_mov_b64 exec, -1')
for k in range(18): e(f'v_lshlrev_b32 v{40+k}, 16, v{40+k}')
for k in range(8): e(f'v_mov_b32 v{72+k}, 0')
for i in range(9):
    for j in range(2):
        unpack(12, 13, 16+2*i+j)
        for b in range(2):
            e(f'v_fmac_f32 v{72+4*b+2*j}, v{40+2*i+b}, v12')
            e(f'v_fmac_f32 v{72+4*b+2*j+1}, v{40+2*i+b}, v13')
e('s_lshl_b32 s33, s3, 1')
e('v_lshrrev_b32 v12, 5, v2')
e('v_add_u32 v12, s33, v12')
e('v_lshlrev_b32 v12, 10, v12')
e('v_lshl_add_u32 v12, v8, 4, v12')
e(f'v_add_u32 v12, {L_RED}, v12')
e('ds_write_b128 v12, v[72:75]')
e('ds_write_b128 v12, v[76:79] offset:512')
TS()
get_tag(13)
last_arriver(C_Q, 8, 12, 13, 'L_C_qdone')
e('v_lshlrev_b32 v12, 4, v2')
e(f'v_add_u32 v13, {L_RED}, v12')
for q in range(2):
    for s in range(8):
        e(f'ds_read_b128 v[{16+4*s}:{19+4*s}], v13 offset:{(q*8+s)*1024}')
    e('s_waitcnt lgkmcnt(0)')
    if q == 0:
        for k in range(4): e(f'v_mov_b32 v{48+k}, v{16+k}')
        rng = range(1, 8)
    else: rng = range(8)
    for s in rng:
        for k in range(4): e(f'v_add_f32 v{48+k}, v{48+k}, v{16+4*s+k}')
def store4tagged(src, vaddr, soff, tmp):
    e(f'v_mov_b32 v{tmp}, v{src}'); e(f'v_mov_b32 v{tmp+1}, s{STAG}'); e(f'v_mov_b32 v{tmp+2}, v{src+1}'); e(f'v_mov_b32 v{tmp+3}, s{STAG}')
    e(f'v_mov_b32 v{tmp+4}, v{src+2}'); e(f'v_mov_b32 v{tmp+5}, s{STAG}'); e(f'v_mov_b32 v{tmp+6}, v{src+3}'); e(f'v_mov_b32 v{tmp+7}, s{STAG}')
    e(f'buffer_store_dwordx4 v[{tmp}:{tmp+3}], v{vaddr}, {WSR}, s{soff} offen sc1')
    e(f'buffer_store_dwordx4 v[{tmp+4}:{tmp+7}], v{vaddr}, {WSR}, s{soff} offen offset:16 sc1')
e('s_lshl_b32 s34, s2, 11')
e(f's_add_u32 s34, s34, {QP}')
e('v_lshlrev_b32 v12, 5, v2')
store4tagged(48, 12, 34, 16)
lab('L_C_qdone')
e('s_cmp_lg_u32 s3, 0')
e('s_cbranch_scc1 L_C_w1')
e('s_bfe_u32 s35, s2, 0x40003')
e('s_lshr_b32 s36, s2, 7')
e('s_lshl_b32 s34, s35, 14')
e('s_lshl_b32 s37, s36, 10')
e('s_add_u32 s34, s34, s37')
e(f's_add_u32 s34, s34, {QP}')
e('v_lshrrev_b32 v12, 5, v2')
e('v_lshlrev_b32 v12, 13, v12')
e('v_and_b32 v13, 31, v2')
e('v_lshl_add_u32 v12, v13, 5, v12')
e('s_add_u32 s35, s42, 32')
e('s_lshl_b32 s35, s35, 13')
e(f's_add_u32 s35, s35, {QP}')
e('v_lshlrev_b32 v15, 5, v2')
e('s_add_u32 s36, s34, 4096')
e('s_add_u32 s37, s35, 4096')
def loads():
    for kq in range(4):
        for hf in range(2):
            r = 16 + (kq*2+hf)*4
            e(f'buffer_load_dwordx4 v[{r}:{r+3}], v12, {WSR}, s{34 if kq<2 else 36} offen offset:{(kq%2)*2048+hf*16} sc1')
    for kq in range(4):
        for hf in range(2):
            r = 72 + (kq*2+hf)*4
            e(f'buffer_load_dwordx4 v[{r}:{r+3}], v15, {WSR}, s{35 if kq<2 else 37} offen offset:{(kq%2)*2048+hf*16} sc1')
tagged_loop(loads, [16+4*k+1 for k in range(8)] + [16+4*k+3 for k in range(8)] + [72+4*k+1 for k in range(8)] + [72+4*k+3 for k in range(8)], 48, 49)
for base, dst in ((16, 48), (72, 52)):
    for hf in range(2):
        for p in range(2):
            d = dst + hf*2 + p
            e(f'v_add_f32 v{d}, v{base+(0*2+hf)*4+2*p}, v{base+(1*2+hf)*4+2*p}')
            e(f'v_add_f32 v{d}, v{d}, v{base+(2*2+hf)*4+2*p}')
            e(f'v_add_f32 v{d}, v{d}, v{base+(3*2+hf)*4+2*p}')
e('v_cvt_pk_bf16_f32 v32, v48, v49')
e('v_cvt_pk_bf16_f32 v33, v50, v51')
e('v_lshlrev_b32 v12, 3, v2')
e(f'ds_write_b64 v12, v[32:33] offset:{L_QA}')
e('v_cvt_pk_bf16_f32 v20, v52, v53')
e('v_cvt_pk_bf16_f32 v21, v54, v55')
unpack(16, 17, 20); unpack(18, 19, 21)
e('v_lshlrev_b32 v12, 4, v2')
e(f'ds_write_b128 v12, v[16:19] offset:{L_QB}')
lds_set(LF_Q, 12, 13)
lab('L_C_w1')
lds_wait(LF_Q, 12, 13)
TS()
e('v_lshlrev_b32 v13, 5, v4')
e(f'ds_read_b128 v[32:35], v13 offset:{L_QB}')
e(f'ds_read_b128 v[36:39], v13 offset:{L_QB+16}')
e(f'ds_read_b128 v[40:43], v13 offset:{L_QB+512}')
e(f'ds_read_b128 v[44:47], v13 offset:{L_QB+528}')
for k in range(4): e(f'v_mov_b32 v{48+k}, 0')
e('s_waitcnt lgkmcnt(0)')
for i in range(2):
    for j in range(4):
        unpack(12, 13, 64+4*i+j)
        for b in range(2):
            e(f'v_fmac_f32 v{48+2*i+b}, v{32+8*b+2*j}, v12')
            e(f'v_fmac_f32 v{48+2*i+b}, v{32+8*b+2*j+1}, v13')
e('s_nop 1')
row_reduce([48, 49, 50, 51])
e('v_cmp_eq_u32 vcc, 1, v4'); e('s_nop 1'); e('v_cndmask_b32 v48, v48, v49, vcc')
e('v_cmp_eq_u32 vcc, 2, v4'); e('s_nop 1'); e('v_cndmask_b32 v48, v48, v50, vcc')
e('v_cmp_eq_u32 vcc, 3, v4'); e('s_nop 1'); e('v_cndmask_b32 v48, v48, v51, vcc')
e('v_cvt_pk_bf16_f32 v48, v48, v48')
e('v_and_b32 v12, 1, v4')
e('v_lshlrev_b32 v12, 7, v12')
e('v_lshrrev_b32 v13, 1, v4')
e('v_lshl_add_u32 v13, v13, 2, v3')
e('s_lshl_b32 s34, s3, 3')
e('v_add_u32 v13, s34, v13')
e('v_lshl_add_u32 v12, v13, 1, v12')
e('s_mov_b32 exec_lo, 0x000f000f'); e('s_mov_b32 exec_hi, 0x000f000f')
e(f'ds_write_b16 v12, v48 offset:{L_UO}')
e('s_mov_b64 exec, -1')
srd(20, 94, 4194304)
e('s_mov_b32 s36, 32768')
e('buffer_load_dwordx4 v[64:67], v10, s[20:23], 0 offen nt')
e('buffer_load_dwordx4 v[68:71], v10, s[20:23], s36 offen nt')
last_arriver(C_U, 8, 12, 13, 'L_C_udone')
e('v_lshlrev_b32 v12, 3, v2')
e(f'ds_read_b64 v[16:17], v12 offset:{L_UO}')
e('v_lshrrev_b32 v13, 4, v2')
e('v_lshlrev_b32 v13, 16, v13')
e('v_lshl_add_u32 v12, v4, 4, v13')
e('s_lshl_b32 s34, s42, 11')
e('s_lshl_b32 s35, s43, 8')
e('s_add_u32 s34, s34, s35')
e(f's_add_u32 s34, s34, {QABS}')
e('s_waitcnt lgkmcnt(0)')
e('v_mov_b32 v18, v17'); e(f'v_mov_b32 v17, s{STAG}'); e(f'v_mov_b32 v19, s{STAG}')
e('s_mov_b32 exec_lo, -1'); e('s_mov_b32 exec_hi, 0')
e(f'buffer_store_dwordx4 v[16:19], v12, {WSR}, s34 offen sc1')
e('s_mov_b64 exec, -1')
set_flag(FLG_U, 2, 12)
lab('L_C_udone')
e('s_cmp_ge_u32 s2, 128')
e('s_cbranch_scc1 L_C_nockv')
e('s_lshl_b32 s33, s2, 16')
e('s_lshl_b32 s34, s3, 13')
e('s_add_u32 s33, s33, s34')
e('v_lshlrev_b32 v11, 4, v2')
e('s_mul_i32 s34, s3, %d' % (8*RS))
e(f's_add_u32 s34, s34, {L_CKV}')
for i in range(8):
    e('s_mov_b32 m0, s34')
    e('s_nop 0')
    e('buffer_load_dwordx4 v11, s[24:27], s33 offen nt lds')
    if i < 7:
        e('s_add_u32 s33, s33, 1024'); e(f's_add_u32 s34, s34, {RS}')
lab('L_C_nockv')
TS()
e('s_cmp_ge_u32 s2, 128')
e('s_cbranch_scc1 L_C_noB')
e('s_cmp_lg_u32 s3, 0')
e('s_cbranch_scc1 L_C_w2')
def em():
    e(f's_mov_b32 s34, {FLG_U}')
poll_flags(em, 256, 12, 16)
lds_set(LF_U, 12, 13)
lab('L_C_w2')
lds_wait(LF_U, 12, 13)
e('s_lshr_b32 s33, s2, 6')
e('s_lshl_b32 s34, s33, 16')
e('s_lshl_b32 s35, s3, 13')
e('s_add_u32 s34, s34, s35')
e(f's_add_u32 s34, s34, {QABS}')
e('s_add_u32 s35, s34, 4096')
e('v_lshlrev_b32 v12, 4, v2')
def loads():
    for k in range(8):
        e(f'buffer_load_dwordx4 v[{16+4*k}:{19+4*k}], v12, {WSR}, s{34 if k<4 else 35} offen offset:{(k%4)*1024} sc1')
tagged_loop(loads, [16+4*k+1 for k in range(8)] + [16+4*k+3 for k in range(8)], 48, 49)
e(f's_mul_i32 s35, s3, {4*QS}')
e(f's_add_u32 s35, s35, {L_QABS}')
e('v_lshlrev_b32 v13, 3, v2')
e('v_add_u32 v13, s35, v13')
for k in range(8):
    e(f'v_mov_b32 v{16+4*k+1}, v{16+4*k+2}')
for k in range(8):
    e(f'ds_write_b64 v13, v[{16+4*k}:{17+4*k}] offset:{(k//2)*QS+(k%2)*512}')
cbar(0, 12, 13)
e('s_lshr_b32 s35, s3, 2')
e('s_and_b32 s36, s3, 3')
e('s_lshl_b32 s37, s36, 4')
e('v_add_u32 v12, s37, v4')
e(f'v_mul_u32_u24 v12, {RS}, v12')
e('v_lshl_add_u32 v12, v3, 4, v12')
e(f'v_add_u32 v12, {L_CKV}, v12')
e('s_lshl_b32 s37, s35, 4')
e('v_add_u32 v13, s37, v4')
e(f'v_mul_u32_u24 v13, {QS}, v13')
e('v_lshl_add_u32 v13, v3, 4, v13')
e(f'v_add_u32 v13, {L_QABS}, v13')
for k in range(4): e(f'v_mov_b32 v{24+k}, 0')
for half in range(2):
    for q in range(8):
        ks = half*8+q
        e(f'ds_read_b128 v[{28+4*q}:{31+4*q}], v12 offset:{ks*64}')
        e(f'ds_read_b128 v[{72+4*q}:{75+4*q}], v13 offset:{ks*64}')
    e('s_waitcnt lgkmcnt(0)')
    for q in range(8):
        e(f'v_mfma_f32_16x16x32_bf16 v[24:27], v[{28+4*q}:{31+4*q}], v[{72+4*q}:{75+4*q}], v[24:27]')
    e('s_nop 3')
e('s_nop 8')
e('s_lshl_b32 s37, s35, 12')
e('s_lshl_b32 s34, s36, 6')
e('s_add_u32 s37, s37, s34')
e('v_lshlrev_b32 v12, 8, v4')
e('v_lshl_add_u32 v12, v3, 4, v12')
e('v_add_u32 v12, s37, v12')
e(f'v_add_u32 v12, {L_S}, v12')
e('ds_write_b128 v12, v[24:27]')
cbar(1, 12, 13)
e('s_lshl_b32 s37, s3, 2')
e('v_add_u32 v12, s37, v3')
e('v_lshlrev_b32 v13, 8, v12')
e('v_lshl_add_u32 v13, v4, 4, v13')
e(f'v_add_u32 v13, {L_S}, v13')
e('ds_read_b128 v[16:19], v13')
e('s_waitcnt lgkmcnt(0)')
e('v_max_f32 v20, v16, v17')
e('v_max3_f32 v20, v20, v18, v19')
e('s_nop 1')
row_reduce([20], 'max')
e('v_mul_f32 v20, s40, v20')
for k in range(4): e(f'v_fma_f32 v{16+k}, v{16+k}, s40, -v20')
for k in range(4): e(f'v_exp_f32 v{16+k}, v{16+k}')
e('s_nop 0')
e('v_add_f32 v21, v16, v17')
e('v_add_f32 v22, v18, v19')
e('v_add_f32 v21, v21, v22')
e('v_cvt_pk_bf16_f32 v22, v16, v17')
e('v_cvt_pk_bf16_f32 v23, v18, v19')
row_reduce([21], 'add')
e('v_mul_u32_u24 v13, 144, v12')
e('v_lshl_add_u32 v13, v4, 3, v13')
e(f'v_add_u32 v13, {L_P}, v13')
e('ds_write_b64 v13, v[22:23]')
e('v_mov_b32 v24, v20'); e(f'v_mov_b32 v25, s{STAG}'); e('v_mov_b32 v26, v21'); e(f'v_mov_b32 v27, s{STAG}')
e('v_lshlrev_b32 v13, 4, v12')
e('s_lshl_b32 s34, s2, 9')
e(f's_add_u32 s34, s34, {BML}')
e('s_mov_b32 exec_lo, 0x00010001'); e('s_mov_b32 exec_hi, 0x00010001')
e(f'buffer_store_dwordx4 v[24:27], v13, {WSR}, s34 offen sc1')
e('s_mov_b64 exec, -1')
cbar(2, 12, 13)
e('v_mul_u32_u24 v12, 144, v4')
e('v_lshl_add_u32 v12, v3, 4, v12')
e(f'v_add_u32 v12, {L_P}, v12')
for hh in range(2):
    for ks in range(2):
        r = 16 + (hh*2+ks)*4
        e(f'ds_read_b128 v[{r}:{r+3}], v12 offset:{hh*16*144+ks*64}')
e('v_lshrrev_b32 v13, 2, v4')
e('v_lshl_add_u32 v13, v3, 3, v13')
e(f'v_mul_u32_u24 v13, {RS}, v13')
e('v_and_b32 v12, 3, v4')
e('v_lshl_add_u32 v13, v12, 3, v13')
e('s_lshl_b32 s37, s3, 7')
e(f's_add_u32 s37, s37, {L_CKV}')
e('v_add_u32 v13, s37, v13')
for ct in range(4):
    for ks in range(2):
        for t in range(2):
            r = 32 + ((ct*2+ks)*2+t)*2
            e(f'ds_read_b64_tr_b16 v[{r}:{r+1}], v13 offset:{(ks*32+t*4)*RS + ct*32}')
for k in range(32): e(f'v_mov_b32 v{72+k}, 0')
e('s_waitcnt lgkmcnt(0)')
for ct in range(4):
    for hh in range(2):
        for ks in range(2):
            a = 32 + (ct*2+ks)*4
            bq = 16 + (hh*2+ks)*4
            d = 72 + (ct*2+hh)*4
            e(f'v_mfma_f32_16x16x32_bf16 v[{d}:{d+3}], v[{a}:{a+3}], v[{bq}:{bq+3}], v[{d}:{d+3}]')
e('s_nop 15')
TS()
for k in range(8):
    d = 72 + 4*k
    e(f'v_cvt_pk_bf16_f32 v{d}, v{d}, v{d+1}')
    e(f'v_cvt_pk_bf16_f32 v{d+2}, v{d+2}, v{d+3}')
    e(f'v_mov_b32 v{d+1}, s{STAG}')
    e(f'v_mov_b32 v{d+3}, s{STAG}')
e('s_lshl_b32 s37, s3, 13')
e(f's_add_u32 s37, s37, {L_BPS}')
e('v_lshlrev_b32 v12, 8, v4')
e('v_lshl_add_u32 v12, v3, 4, v12')
e('v_add_u32 v12, s37, v12')
for ct in range(4):
    for hh in range(2):
        d = 72 + (ct*2+hh)*4
        e(f'ds_write_b128 v12, v[{d}:{d+3}] offset:{hh*4096+ct*64}')
e('v_lshlrev_b32 v13, 4, v2')
e('v_add_u32 v13, s37, v13')
e('s_waitcnt lgkmcnt(0)')
for k in range(8):
    e(f'ds_read_b128 v[{16+4*k}:{19+4*k}], v13 offset:{k*1024}')
e('s_lshl_b32 s34, s2, 16')
e('s_lshl_b32 s37, s3, 8')
e('s_add_u32 s34, s34, s37')
e(f's_add_u32 s34, s34, {BP}')
e('v_lshlrev_b32 v12, 11, v3')
e('v_lshl_add_u32 v12, v4, 4, v12')
e('s_waitcnt lgkmcnt(0)')
for k in range(8):
    e(f'buffer_store_dwordx4 v[{16+4*k}:{19+4*k}], v12, {WSR}, s34 offen sc1')
    if k < 7: e('s_add_u32 s34, s34, 8192')
e('v_mov_b32 v12, %d' % (C_BAR + 4*6)); e('v_mov_b32 v13, 1')
e('s_mov_b64 exec, 1'); e('ds_add_u32 v12, v13'); e('s_mov_b64 exec, -1')
last_arriver(C_BP, 8, 12, 13, 'L_C_bdone')
set_flag(FLG_BP, 2, 12)
lab('L_C_bdone')
TS()
lab('L_C_noB')
def task_decode(st):
    e(f's_cmp_ge_u32 s{st}, 144')
    e('s_cselect_b32 s58, 1, 0')
    e('s_mul_i32 s59, s58, 144')
    e(f's_sub_u32 s59, s{st}, s59')
    e('s_and_b32 s60, s59, 15')
    e('s_lshr_b32 s59, s59, 4')
def o_prefetch(st, reg):
    task_decode(st)
    e('s_cmp_eq_u32 s58, 0')
    e('s_cselect_b32 s54, s86, s96')
    e('s_cselect_b32 s55, s87, s97')
    srd(24, 54, 4718592)
    e('s_lshl_b32 s33, s60, 8')
    e('s_lshl_b32 s34, s3, 5')
    e('s_add_u32 s33, s33, s34')
    e('v_lshrrev_b32 v12, 3, v2')
    e('v_add_u32 v12, s33, v12')
    e('s_movk_i32 s34, 1152')
    e('v_mul_lo_u32 v12, v12, s34')
    e('v_and_b32 v13, 7, v2')
    e('v_lshl_add_u32 v12, v13, 4, v12')
    e('s_lshl_b32 s34, s59, 7')
    for i in range(4):
        e(f'buffer_load_dwordx4 v[{reg+4*i}:{reg+4*i+3}], v12, s[24:27], s34 offen nt')
        if i < 3: e(f's_add_u32 s34, s34, {8*1152}')
o_prefetch(2, 96)
e('s_cmp_lg_u32 s3, 0')
e('s_cbranch_scc1 L_C_w3')
def em():
    e(f's_mov_b32 s34, {FLG_BP}')
poll_flags(em, 128, 12, 16)
lds_set(LF_BP, 12, 13)
lab('L_C_w3')
lds_wait(LF_BP, 12, 13)
e('s_lshr_b32 s33, s3, 2')
e('s_and_b32 s35, s3, 3')
e('s_lshl_b32 s34, s33, 6')
e('v_add_u32 v12, s34, v2')
e('v_lshlrev_b32 v12, 5, v12')
e('v_add_u32 v12, s42, v12')
e('v_lshlrev_b32 v12, 4, v12')
e('s_lshl_b32 s34, s35, 4')
e('v_add_u32 v15, s34, v3')
e('s_lshl_b32 s34, s33, 6')
e('v_add_u32 v13, s34, v15')
e('v_lshlrev_b32 v13, 5, v13')
e('v_add_u32 v13, s42, v13')
e('v_lshlrev_b32 v13, 11, v13')
e('v_lshl_add_u32 v13, v4, 4, v13')
e('s_lshl_b32 s34, s43, 8')
e(f's_add_u32 s34, s34, {BP}')
e(f's_mov_b32 s35, {BML}')
e(f's_add_u32 s36, s34, {4*32*2048}')
e(f's_add_u32 s37, s36, {4*32*2048}')
e(f's_add_u32 s38, s37, {4*32*2048}')
def loads():
    e(f'buffer_load_dwordx4 v[40:43], v12, {WSR}, s35 offen sc1')
    for i in range(4):
        e(f'buffer_load_dwordx4 v[{16+4*i}:{19+4*i}], v13, {WSR}, s{[34,36,37,38][i]} offen sc1')
tagged_loop(loads, [41, 43] + [16+4*k+1 for k in range(4)] + [16+4*k+3 for k in range(4)], 48, 49)
TS()
e('v_mov_b32 v44, v40')
e('s_nop 1')
row_reduce([44], 'max')
xrow_reduce([44], [45], 'max')
e('v_sub_f32 v40, v40, v44')
e('v_exp_f32 v40, v40')
e('s_nop 0')
e('v_mul_f32 v44, v40, v42')
e('s_nop 1')
row_reduce([44], 'add')
xrow_reduce([44], [45], 'add')
e('v_rcp_f32 v44, v44')
e('s_nop 0')
e('v_mul_f32 v40, v40, v44')
for i in range(4):
    e(f'v_add_u32 v45, {4*i}, v15')
    e('v_lshlrev_b32 v45, 2, v45')
    e(f'ds_bpermute_b32 v{48+i}, v45, v40')
e('s_waitcnt lgkmcnt(0)')
for k in range(4): e(f'v_mov_b32 v{52+k}, 0')
for i in range(4):
    for p in range(2):
        unpack(12, 13, 16+4*i+2*p)
        e(f'v_fmac_f32 v{52+2*p}, v{48+i}, v12')
        e(f'v_fmac_f32 v{53+2*p}, v{48+i}, v13')
xrow_reduce([52, 53, 54, 55], [56, 57, 58, 59], 'add')
VR = L_CKV
e('s_cmp_ge_u32 s2, 128')
e('s_cbranch_scc1 L_C_vr')
Lq = uid('ckw')
e('v_mov_b32 v12, %d' % (C_BAR + 4*6))
lab(Lq)
e('ds_read_b32 v13, v12'); e('s_waitcnt lgkmcnt(0)'); e('v_readfirstlane_b32 s32, v13'); e('s_nop 0')
e('s_cmp_ge_u32 s32, 8'); e(f's_cbranch_scc1 L_C_vr'); spin_guard(); e(f's_branch {Lq}')
lab('L_C_vr')
e('s_lshl_b32 s34, s3, 8')
e(f's_add_u32 s34, s34, {VR}')
e('v_lshlrev_b32 v12, 4, v4')
e('v_add_u32 v12, s34, v12')
e('ds_write_b128 v12, v[52:55]')
cbar(3, 12, 13)
e('s_lshl_b32 s34, s3, 3')
e('v_add_u32 v12, s34, v3')
e('v_lshlrev_b32 v12, 2, v12')
e(f'v_add_u32 v12, {VR}, v12')
for i in range(2):
    for b in range(2):
        for q in range(4):
            e(f'ds_read_b32 v{16+(i*2+b)*4+q}, v12 offset:{(b*4+q)*256+i*16}')
e('s_waitcnt lgkmcnt(0)')
for ib in range(4):
    for q in range(1, 4): e(f'v_add_f32 v{16+ib*4}, v{16+ib*4}, v{16+ib*4+q}')
for k in range(16): e(f'v_mov_b32 v{32+k}, 0')
for i in range(2):
    for j in range(4):
        unpack(12, 13, 64+4*i+j)
        for b in range(2):
            e(f'v_fmac_f32 v{32+8*b+2*j}, v{16+(i*2+b)*4}, v12')
            e(f'v_fmac_f32 v{32+8*b+2*j+1}, v{16+(i*2+b)*4}, v13')
xrow_reduce([32+k for k in range(16)], [48+k for k in range(16)], 'add')
e('s_lshl_b32 s34, s3, 10')
e(f's_add_u32 s34, s34, {VR+4096}')
e('v_lshlrev_b32 v12, 5, v4')
e('v_add_u32 v12, s34, v12')
e('s_mov_b64 exec, 0xffff')
e('ds_write_b128 v12, v[32:35]')
e('ds_write_b128 v12, v[36:39] offset:16')
e('ds_write_b128 v12, v[40:43] offset:512')
e('ds_write_b128 v12, v[44:47] offset:528')
e('s_mov_b64 exec, -1')
last_arriver(C_V, 8, 12, 13, 'L_C_vdone')
e('v_lshlrev_b32 v12, 4, v2')
e(f'v_add_u32 v13, {VR+4096}, v12')
for s in range(8): e(f'ds_read_b128 v[{16+4*s}:{19+4*s}], v13 offset:{s*1024}')
e('s_waitcnt lgkmcnt(0)')
for s in range(1, 8):
    for k in range(4): e(f'v_add_f32 v{16+k}, v{16+k}, v{16+4*s+k}')
e('s_lshl_b32 s34, s2, 11')
e(f's_add_u32 s34, s34, {CTXP}')
e('v_lshlrev_b32 v12, 5, v2')
store4tagged(16, 12, 34, 48)
set_flag(FLG_V, 2, 12)
lab('L_C_vdone')
TS()
def o_stage(st, reg, cnt, bark, LOV, LRD, lf):
    task_decode(st)
    Lb, Lj, Ld = uid('ob'), uid('oj'), uid('od')
    Lw, Lw2, Lp = uid('ow'), uid('ow2'), uid('op')
    e('s_cmp_lg_u32 s3, 0')
    e(f's_cbranch_scc1 {Lw}')
    e('s_cmp_eq_u32 s58, 0')
    e(f's_cbranch_scc0 {Lp}')
    for b in range(2):
        def em():
            e(f's_add_u32 s34, s60, {b*16}')
            e('s_lshl_b32 s34, s34, 10')
            e(f's_add_u32 s34, s34, {FLG_AP}')
        poll_flags(em, 8, 12, 16)
    e(f's_branch {Lw2}')
    lab(Lp)
    def em():
        e('s_lshl_b32 s34, s60, 11')
        e(f's_add_u32 s34, s34, {FLG_V}')
    poll_flags(em, 16, 12, 16)
    lab(Lw2)
    lds_set(lf, 12, 13)
    lab(Lw)
    lds_wait(lf, 12, 13)
    e('s_cmp_eq_u32 s58, 0')
    e(f's_cbranch_scc0 {Lb}')
    e('s_lshr_b32 s33, s3, 2')
    e('s_and_b32 s35, s3, 3')
    e('s_lshl_b32 s34, s33, 4')
    e('s_add_u32 s34, s34, s60')
    e('s_lshl_b32 s36, s34, 14')
    e('s_lshl_b32 s37, s35, 9')
    e('s_add_u32 s36, s36, s37')
    e(f's_add_u32 s36, s36, {AP}')
    e('v_lshlrev_b32 v12, 3, v2')
    e('s_add_u32 s37, s36, 4096'); e('s_add_u32 s38, s36, 8192'); e('s_add_u32 s32, s36, 12288')
    e('s_lshl_b32 s34, s34, 8')
    e('s_lshr_b32 s33, s35, 1')
    e('s_lshl_b32 s33, s33, 4')
    e('s_add_u32 s34, s34, s33')
    e(f's_add_u32 s34, s34, {AML}')
    e('v_mov_b32 v13, 0')
    def loads():
        for c in range(8):
            e(f'buffer_load_dwordx2 v[{16+2*c}:{17+2*c}], v12, {WSR}, s{[36,37,38,32][c//2]} offen offset:{(c%2)*2048} sc1')
        for c in range(8):
            e(f'buffer_load_dwordx4 v[{64+4*c - 32 if False else 32+4*c}:{35+4*c}], v13, {WSR}, s34 offen offset:{c*32} sc1')
    tagged_loop(loads, [17+2*c for c in range(8)] + [33+4*c for c in range(8)] + [35+4*c for c in range(8)], 14, 15)
    e('v_max_f32 v13, v32, v36')
    for c in range(2, 8): e(f'v_max_f32 v13, v13, v{32+4*c}')
    for c in range(8): e(f'v_sub_f32 v{32+4*c}, v{32+4*c}, v13')
    for c in range(8): e(f'v_exp_f32 v{32+4*c}, v{32+4*c}')
    e('v_mov_b32 v14, 0'); e('v_mov_b32 v15, 0')
    for c in range(8):
        e(f'v_fmac_f32 v14, v{32+4*c}, v{34+4*c}')
        e(f'v_fmac_f32 v15, v{32+4*c}, v{16+2*c}')
    e('v_rcp_f32 v14, v14')
    e('s_nop 0')
    e('v_mul_f32 v15, v15, v14')
    e(f's_branch {Lj}')
    lab(Lb)
    e('s_lshr_b32 s33, s3, 2')
    e('s_and_b32 s35, s3, 3')
    e('s_lshr_b32 s37, s35, 1')
    e('s_lshl_b32 s34, s60, 1')
    e('s_add_u32 s34, s34, s37')
    e('s_lshl_b32 s36, s34, 14')
    e('s_lshl_b32 s37, s33, 10')
    e('s_add_u32 s36, s36, s37')
    e('s_and_b32 s37, s35, 1')
    e('s_lshl_b32 s37, s37, 9')
    e('s_add_u32 s36, s36, s37')
    e(f's_add_u32 s36, s36, {CTXP}')
    e('v_lshlrev_b32 v12, 3, v2')
    e('s_add_u32 s37, s36, 4096'); e('s_add_u32 s38, s36, 8192'); e('s_add_u32 s32, s36, 12288')
    def loads():
        for c in range(8):
            e(f'buffer_load_dwordx2 v[{16+2*c}:{17+2*c}], v12, {WSR}, s{[36,37,38,32][c//2]} offen offset:{(c%2)*2048} sc1')
    tagged_loop(loads, [17+2*c for c in range(8)], 14, 15)
    e('v_mov_b32 v15, v16')
    for c in range(1, 8): e(f'v_add_f32 v15, v15, v{16+2*c}')
    lab(Lj)
    e('v_cvt_pk_bf16_f32 v15, v15, v15')
    e('v_lshlrev_b32 v15, 16, v15')
    e('s_lshl_b32 s34, s3, 8')
    e(f's_add_u32 s34, s34, {LOV}')
    e('v_lshlrev_b32 v12, 2, v2')
    e('v_add_u32 v12, s34, v12')
    e('ds_write_b32 v12, v15')
    cbar(bark, 12, 13)
    e('s_lshl_b32 s34, s3, 5')
    e('v_lshrrev_b32 v12, 3, v2')
    e('v_add_u32 v12, s34, v12')
    e('v_lshlrev_b32 v12, 2, v12')
    e(f'v_add_u32 v12, {LOV}, v12')
    for i in range(4):
        for b in range(2):
            e(f'ds_read_b32 v{16+2*i+b}, v12 offset:{b*1024+i*32}')
    for k in range(16): e(f'v_mov_b32 v{32+k}, 0')
    e('s_waitcnt vmcnt(0) lgkmcnt(0)')
    for i in range(4):
        for j in range(4):
            unpack(12, 13, reg+4*i+j)
            for b in range(2):
                e(f'v_fmac_f32 v{32+8*b+2*j}, v{16+2*i+b}, v12')
                e(f'v_fmac_f32 v{32+8*b+2*j+1}, v{16+2*i+b}, v13')
    for k in range(16): e(f'v_add_f32_dpp v{32+k}, v{32+k}, v{32+k} row_ror:8 row_mask:0xf bank_mask:0xf')
    xrow_reduce([32+k for k in range(16)], [48+k for k in range(16)], 'add')
    e('s_lshl_b32 s34, s3, 9')
    e(f's_add_u32 s34, s34, {LRD}')
    e('v_lshlrev_b32 v12, 5, v2')
    e('v_add_u32 v12, s34, v12')
    e('s_mov_b64 exec, 0xff')
    e('ds_write_b128 v12, v[32:35]')
    e('ds_write_b128 v12, v[36:39] offset:16')
    e('ds_write_b128 v12, v[40:43] offset:256')
    e('ds_write_b128 v12, v[44:47] offset:272')
    e('s_mov_b64 exec, -1')
    last_arriver(cnt, 8, 12, 13, Ld)
    e('v_lshlrev_b32 v12, 3, v2')
    e(f'v_add_u32 v13, {LRD}, v12')
    for s in range(8): e(f'ds_read_b64 v[{16+2*s}:{17+2*s}], v13 offset:{s*512}')
    e('s_waitcnt lgkmcnt(0)')
    for s in range(1, 8):
        e(f'v_add_f32 v16, v16, v{16+2*s}'); e(f'v_add_f32 v17, v17, v{17+2*s}')
    e('v_mov_b32 v18, v17'); e(f'v_mov_b32 v17, s{STAG}'); e(f'v_mov_b32 v19, s{STAG}')
    e(f's_lshl_b32 s34, s{st}, 10')
    e(f's_add_u32 s34, s34, {OUTP}')
    e('v_lshlrev_b32 v12, 4, v2')
    e(f'buffer_store_dwordx4 v[16:19], v12, {WSR}, s34 offen sc1')
    set_flag(FLG_O, st, 12)
    lab(Ld)
OSC = L_CKV + 16384
o_stage(2, 96, C_O, 4, L_OV, OSC, LF_O0)
TS()
e('s_sub_u32 s61, s2, 240')
e('s_cmp_lt_u32 s61, 9')
e('s_cbranch_scc0 L_C_end')
e('s_cmp_eq_u32 s3, 7')
e('s_cbranch_scc0 L_C_end')
srd(20, 98, 1152); srd(24, 100, 2304)
e('v_lshlrev_b32 v12, 1, v2')
for k in range(9):
    e(f'buffer_load_ushort v{16+k}, v12, s[20:23], 0 offen offset:{k*128}')
    e(f'buffer_load_ushort v{32+k}, v12, s[{S_X}:{S_X+3}], 0 offen offset:{k*128}')
    e(f'buffer_load_ushort v{48+k}, v12, s[{S_X}:{S_X+3}], 0 offen offset:{k*128+1152}')
e('s_waitcnt vmcnt(0)')
e('v_mov_b32 v60, 0'); e('v_mov_b32 v61, 0')
for k in range(9):
    e(f'v_lshlrev_b32 v{16+k}, 16, v{16+k}')
    e(f'v_lshlrev_b32 v{32+k}, 16, v{32+k}')
    e(f'v_lshlrev_b32 v{48+k}, 16, v{48+k}')
    e(f'v_mul_f32 v{32+k}, v{32+k}, v{16+k}')
    e(f'v_mul_f32 v{48+k}, v{48+k}, v{16+k}')
    e(f'v_cvt_pk_bf16_f32 v62, v{32+k}, v{48+k}')
    unpack(63, 64, 62)
    e('v_add_f32 v60, v60, v63'); e('v_add_f32 v61, v61, v64')
e('s_nop 1')
row_reduce([60, 61], 'add')
xrow_reduce([60, 61], [62, 63], 'add')
e('v_cvt_pk_bf16_f32 v62, v60, v61')
unpack(60, 61, 62)
e(f's_mov_b32 s33, {f32hex(-1.4426950408889634)}')
e('v_mul_f32 v60, s33, v60'); e('v_mul_f32 v61, s33, v61')
e('v_exp_f32 v60, v60'); e('v_exp_f32 v61, v61'); e('s_nop 0')
e('v_add_f32 v60, 1.0, v60'); e('v_add_f32 v61, 1.0, v61')
e('v_rcp_f32 v60, v60'); e('v_rcp_f32 v61, v61'); e('s_nop 0')
e('v_cvt_pk_bf16_f32 v62, v60, v61')
unpack(60, 61, 62)
e('v_cmp_le_u32 vcc, 32, v2'); e('s_nop 1')
e('v_cndmask_b32 v60, v60, v61, vcc')
for m in range(2):
    def em():
        e('s_lshl_b32 s34, s61, 11')
        e(f's_add_u32 s34, s34, {FLG_O + m*144*128}')
    poll_flags(em, 16, 12, 16)
e('v_lshlrev_b32 v12, 4, v2')
e('s_lshl_b32 s34, s61, 14')
e(f's_add_u32 s34, s34, {OUTP}')
for q in range(1, 4): e(f's_add_u32 s{34+q}, s34, {q*4096}')
e(f's_add_u32 s50, s34, {144*1024}')
for q in range(1, 4): e(f's_add_u32 s{50+q}, s50, {q*4096}')
acc_init = [True]
for m in range(2):
    base = 34 if m == 0 else 50
    def loads():
        for t in range(16):
            e(f'buffer_load_dwordx4 v[{64+4*t if t<16 else 0}:{67+4*t}], v12, {WSR}, s{base+t//4} offen offset:{(t%4)*1024} sc1')
    tagged_loop(loads, [64+4*t+1 for t in range(16)] + [64+4*t+3 for t in range(16)], 14, 15)
    d = 16 + 2*m
    e(f'v_mov_b32 v{d}, v64'); e(f'v_mov_b32 v{d+1}, v66')
    for t in range(1, 16):
        e(f'v_add_f32 v{d}, v{d}, v{64+4*t}'); e(f'v_add_f32 v{d+1}, v{d+1}, v{66+4*t}')
e('v_cvt_pk_bf16_f32 v62, v16, v17'); unpack(16, 17, 62)
e('v_cvt_pk_bf16_f32 v62, v18, v19'); unpack(18, 19, 62)
e('v_sub_f32 v61, 1.0, v60')
e('v_cvt_pk_bf16_f32 v62, v61, v61'); e('v_lshlrev_b32 v61, 16, v62')
e('v_mul_f32 v16, v60, v16'); e('v_mul_f32 v17, v60, v17')
e('v_cvt_pk_bf16_f32 v62, v16, v17'); unpack(16, 17, 62)
e('v_mul_f32 v18, v61, v18'); e('v_mul_f32 v19, v61, v19')
e('v_cvt_pk_bf16_f32 v62, v18, v19'); unpack(18, 19, 62)
e('v_add_f32 v16, v16, v18'); e('v_add_f32 v17, v17, v19')
e('v_cvt_pk_bf16_f32 v62, v16, v17')
e('v_lshrrev_b32 v12, 5, v2')
e('v_mul_u32_u24 v12, 1152, v12')
e('v_and_b32 v13, 31, v2')
e('v_lshl_add_u32 v12, v13, 2, v12')
e('s_lshl_b32 s34, s61, 7')
e('buffer_store_dword v62, v12, s[24:27], s34 offen')
lab('L_C_end')
TS()
ts_dump()
e('s_endpgm')
lab('L_A_tail')
e(f's_load_dwordx2 s[86:87], s[0:1], {KA["A_wo"]}')
e(f's_load_dwordx2 s[96:97], s[0:1], {KA["B_wo"]}')
e('s_add_u32 s61, s61, 256')
e('s_waitcnt lgkmcnt(0)')
e('s_setprio 2')
o_prefetch(61, 112)
o_stage(61, 112, C_O2, 5, L_OV+2048, OSC+4096, LF_O1)
e('s_endpgm')
lab('L_bail')
e('s_endpgm')
lab('L_exit')
e('s_endpgm')
out += ['.section .rodata,"a"', '.p2align 6', f'.amdhsa_kernel {NAME}', '  .amdhsa_next_free_vgpr 128', '  .amdhsa_next_free_sgpr 102',
  '  .amdhsa_accum_offset 128', '  .amdhsa_group_segment_fixed_size 0', '  .amdhsa_kernarg_size 120', '  .amdhsa_user_sgpr_count 2',
  '  .amdhsa_user_sgpr_kernarg_segment_ptr 1', '  .amdhsa_system_sgpr_workgroup_id_x 1', '.end_amdhsa_kernel']
open(sys.argv[1], 'w').write(HEADER + f'; @launch grid=(256,1,1) block=(1024,1,1) lds={(L_END+255)//256*256}\n' + '\n'.join(out) + '\n')
print('LDS', L_END, 'stamps', nA, ts_n[0])
```

```python
import sys, struct, re, os

REF = open('gated_mix__gqa_block_cached__compressed_kv_cla__decode.s.ref').read()
HEADER = REF.split('; Override')[0]
NAME = 'gated_mix__gqa_block_cached__compressed_kv_cla__decode_kernel'
TSTAMP = int(os.environ.get('TSTAMP', '0'))
KDEPTH = int(os.environ.get('KDEPTH', '4'))
VDEPTH = int(os.environ.get('VDEPTH', '4'))
QLW = int(os.environ.get('QLW', '1'))
NOA = int(os.environ.get('NOA', '0'))
SLEEP = int(os.environ.get('SLEEP', '2'))

FLG_Q, FLG_U, FLG_BP, FLG_V, FLG_AP, FLG_O = [0xC00000 + k*0x10000 for k in range(6)]
FS = 7
QP   = 0x010000
QABS = 0x090000
AP   = 0x0B0000
AML  = 0x130000
BML  = 0x140000
CTXP = 0x150000
OUTP = 0x1D0000
TSB  = 0x280000
BP   = 0x400000
WS_USED = 0xD00000

CSC = 0.08838834764831845 * 1.4426950408889634
def f32hex(x): return '0x%08x' % struct.unpack('<I', struct.pack('<f', x))[0]

out = []
def e(s):
    m = re.search(r'offset:(\d+)', s)
    if m and s.startswith('buffer_'): assert int(m.group(1)) < 4096, s
    if m and s.startswith('ds_') and 'swizzle' not in s: assert int(m.group(1)) < 65536, s
    out.append('  ' + s)
def lab(s): out.append(s + ':')
_uid = [0]
def uid(p):
    _uid[0] += 1
    return f'L_{p}_{_uid[0]}'

KA = dict(A_x=0, A_k=8, A_v=16, A_wq=24, A_wo=32, B_x=40, B_ckv=48, B_wq=56, B_wuk=64, B_wuv=72, B_wo=80, gate=88, out=96, dbg=104, ws=112)

def srd(s, plo, nbytes):
    e(f's_mov_b32 s{s}, s{plo}')
    e(f's_and_b32 s{s+1}, s{plo+1}, 0xffff')
    e(f's_mov_b32 s{s+2}, {nbytes}')
    e(f's_mov_b32 s{s+3}, 0x20000')

def unpack(lo, hi, src):
    e(f'v_lshlrev_b32 v{lo}, 16, v{src}')
    e(f'v_and_b32 v{hi}, 0xffff0000, v{src}')

def row_reduce(regs, op='add'):
    for sh in (8, 4, 2, 1):
        for r in regs:
            e(f'v_{op}_f32_dpp v{r}, v{r}, v{r} row_ror:{sh} row_mask:0xf bank_mask:0xf')
        if len(regs) < 3: e('s_nop 1')

def xrow_reduce(regs, tmp, op='add'):
    for r, t in zip(regs, tmp): e(f'v_mov_b32 v{t}, v{r}')
    if len(regs) < 3: e('s_nop 1')
    for r, t in zip(regs, tmp): e(f'v_permlane16_swap_b32 v{r}, v{t}')
    if len(regs) < 3: e('s_nop 1')
    for r, t in zip(regs, tmp): e(f'v_{op}_f32 v{r}, v{r}, v{t}')
    for r, t in zip(regs, tmp): e(f'v_mov_b32 v{t}, v{r}')
    if len(regs) < 3: e('s_nop 1')
    for r, t in zip(regs, tmp): e(f'v_permlane32_swap_b32 v{r}, v{t}')
    if len(regs) < 3: e('s_nop 1')
    for r, t in zip(regs, tmp): e(f'v_{op}_f32 v{r}, v{r}, v{t}')

S_WS, S_DBG, S_X = 4, 8, 12
WSR = f's[{S_WS}:{S_WS+3}]'
STAG = 39
ts_n = [0]
def TS():
    if TSTAMP:
        k = ts_n[0]; ts_n[0] += 1
        assert k < 10
        e(f's_memrealtime s[{64+2*k}:{65+2*k}]')

def ts_dump():
    if not TSTAMP: return
    e('s_waitcnt lgkmcnt(0)')
    e('s_lshl_b32 s32, s2, 4'); e('s_add_u32 s32, s32, s63'); e('s_lshl_b32 s32, s32, 7'); e(f's_add_u32 s32, s32, {TSB}')
    e('s_mov_b64 exec, 1')
    e('v_mov_b32 v2, 0')
    for k in range(ts_n[0]):
        e(f'v_mov_b32 v4, s{64+2*k}'); e(f'v_mov_b32 v5, s{65+2*k}')
        e(f'buffer_store_dwordx2 v[4:5], v2, {WSR}, s32 offen offset:{k*8}')
        e('s_nop 1')
    e('s_mov_b64 exec, -1')

C_Q, C_U, C_BP, C_V, C_A, C_O, C_O2 = 0, 4, 8, 12, 16, 20, 24
C_BAR = 64
L_FLG = 128
L_QA   = 256
L_QB   = L_QA + 512
L_UO   = L_QB + 1024
L_BST  = L_UO + 256
L_AML  = L_BST + 256
L_AO   = L_AML + 256
L_P    = L_AO + 8192
L_OV   = L_P + 4608
L_RED  = L_OV + 4096
QS = 1040
L_QABS = L_RED + 24576
L_S    = L_QABS + 32*QS
L_CKV  = L_S + 8192
RS = 1056
L_END  = L_CKV + 64*RS
assert L_END <= 163840, L_END
L_BPS = L_RED
assert L_S + 8192 - L_RED >= 65536

def spin_guard():
    e('s_add_u32 s62, s62, 1')
    e('s_cmp_gt_u32 s62, 0x1000000')
    e('s_cbranch_scc1 L_bail')

def cbar(k, va, vt, st=32):
    L = uid('cbar')
    e('s_waitcnt lgkmcnt(0)')
    e(f'v_mov_b32 v{va}, {C_BAR + 4*k}')
    e(f'v_mov_b32 v{vt}, 1')
    e('s_mov_b64 exec, 1')
    e(f'ds_add_u32 v{va}, v{vt}')
    e('s_mov_b64 exec, -1')
    lab(L)
    e(f'ds_read_b32 v{vt}, v{va}')
    e('s_waitcnt lgkmcnt(0)')
    e(f'v_readfirstlane_b32 s{st}, v{vt}')
    e('s_nop 0')
    e(f's_cmp_ge_u32 s{st}, 8')
    e(f's_cbranch_scc1 {L}_d')
    spin_guard()
    e('s_sleep 0')
    e(f's_branch {L}')
    lab(L + '_d')

def lds_wait(idx, va, vt, st=32):
    L = uid('lw')
    e(f'v_mov_b32 v{va}, {L_FLG + 4*idx}')
    lab(L)
    e(f'ds_read_b32 v{vt}, v{va}')
    e('s_waitcnt lgkmcnt(0)')
    e(f'v_readfirstlane_b32 s{st}, v{vt}')
    e('s_nop 0')
    e(f's_cmp_lg_u32 s{st}, 0')
    e(f's_cbranch_scc1 {L}_d')
    spin_guard()
    e('s_sleep 1')
    e(f's_branch {L}')
    lab(L + '_d')

def lds_set(idx, va, vt):
    e('s_waitcnt lgkmcnt(0)')
    e(f'v_mov_b32 v{va}, {L_FLG + 4*idx}')
    e(f'v_mov_b32 v{vt}, 1')
    e(f'ds_write_b32 v{va}, v{vt}')

def last_arriver(cnt, n, va, vt, skip_label, st=32):
    e('s_waitcnt lgkmcnt(0)')
    e(f'v_mov_b32 v{va}, {cnt}')
    e(f'v_mov_b32 v{vt}, 1')
    e('s_mov_b64 exec, 1')
    e(f'ds_add_rtn_u32 v{vt}, v{va}, v{vt}')
    e('s_waitcnt lgkmcnt(0)')
    e('s_mov_b64 exec, -1')
    e(f'v_readfirstlane_b32 s{st}, v{vt}')
    e('s_nop 0')
    e(f's_cmp_lg_u32 s{st}, {n-1}')
    e(f's_cbranch_scc1 {skip_label}')

L_TAG = 192
def master_get_tag(vt, va):
    L = uid('tag')
    lab(L)
    e(f'v_mov_b32 v{vt}, 0')
    e(f'buffer_load_dword v{vt}, v{vt}, s[{S_DBG}:{S_DBG+3}], 0 offen sc1')
    e('s_waitcnt vmcnt(0)')
    e(f'v_readfirstlane_b32 s{STAG}, v{vt}')
    spin_guard()
    e(f's_cmp_lg_u32 s{STAG}, 0')
    e(f's_cbranch_scc1 {L}_d')
    e('s_sleep 2')
    e(f's_branch {L}')
    lab(L + '_d')
    e(f'v_mov_b32 v{va}, {L_TAG}')
    e(f'ds_write_b32 v{va}, v{vt}')

def get_tag(vt):
    L = uid('tag')
    lab(L)
    e(f'v_mov_b32 v{vt}, {L_TAG}')
    e(f'ds_read_b32 v{vt}, v{vt}')
    e('s_waitcnt lgkmcnt(0)')
    e(f'v_readfirstlane_b32 s{STAG}, v{vt}')
    spin_guard()
    e(f's_cmp_lg_u32 s{STAG}, 0')
    e(f's_cbranch_scc1 {L}_d')
    e('s_sleep 1')
    e(f's_branch {L}')
    lab(L + '_d')

def set_flag(flg_off, idx_sgpr, vt):
    e(f's_lshl_b32 s33, s{idx_sgpr}, {FS}')
    e(f's_add_u32 s33, s33, {flg_off}')
    e(f'v_mov_b32 v{vt}, 0')
    e(f'v_mov_b32 v{vt+1}, s{STAG}')
    e('s_mov_b64 exec, 1')
    e(f'buffer_store_dword v{vt+1}, v{vt}, {WSR}, s33 offen sc1')
    e('s_mov_b64 exec, -1')

def poll_flags(soff_expr_emit, nflags, vaddr, vf):
    L = uid('poll')
    soff_expr_emit()
    per = (nflags + 63) // 64
    nl = min(nflags, 64)
    e(f'v_lshlrev_b32 v{vaddr}, {FS}, v2')
    if nl < 64: e(f's_mov_b64 exec, {hex((1 << nl) - 1)}')
    for j in range(1, per): e(f's_add_u32 s{50+j}, s34, {j*64*128}')
    lab(L)
    for j in range(per):
        e(f'buffer_load_dword v{vf+j}, v{vaddr}, {WSR}, s{34 if j == 0 else 50+j} offen sc1')
    e('s_waitcnt vmcnt(0)')
    e(f'v_cmp_ne_u32 vcc, s{STAG}, v{vf}')
    for j in range(1, per):
        e(f'v_cmp_ne_u32 s[36:37], s{STAG}, v{vf+j}')
        e('s_or_b64 vcc, vcc, s[36:37]')
    e(f's_cbranch_vccz {L}_d')
    spin_guard()
    e(f's_sleep {SLEEP}')
    e(f's_branch {L}')
    lab(L + '_d')
    e('s_mov_b64 exec, -1')

def tagged_loop(emit_loads, tag_regs, vmin, vmax, mask=None):
    L = uid('tl')
    lab(L)
    emit_loads()
    e('s_waitcnt vmcnt(0)')
    tr = list(tag_regs)
    e(f'v_mov_b32 v{vmin}, s{STAG}')
    e(f'v_mov_b32 v{vmax}, s{STAG}')
    while tr:
        if len(tr) >= 2:
            a, b = tr.pop(0), tr.pop(0)
            e(f'v_min3_u32 v{vmin}, v{vmin}, v{a}, v{b}')
            e(f'v_max3_u32 v{vmax}, v{vmax}, v{a}, v{b}')
        else:
            a = tr.pop(0)
            e(f'v_min_u32 v{vmin}, v{vmin}, v{a}')
            e(f'v_max_u32 v{vmax}, v{vmax}, v{a}')
    e(f'v_cmp_ne_u32 vcc, v{vmin}, v{vmax}')
    e(f's_cbranch_vccz {L}_d')
    spin_guard()
    e(f's_sleep {SLEEP}')
    e(f's_branch {L}')
    lab(L + '_d')

LF_Q, LF_U, LF_BP, LF_O0, LF_O1 = 0, 1, 2, 3, 4

out += ['.amdgcn_target "amdgcn-amd-amdhsa--gfx950"', '.text', f'.globl {NAME}', '.p2align 8', f'.type {NAME},@function']
lab(NAME)
e('s_cmp_ge_u32 s2, 256')
e('s_cbranch_scc1 L_exit')
TS()
e(f's_load_dwordx4 s[44:47], s[0:1], {KA["dbg"]}')
e(f's_load_dwordx2 s[48:49], s[0:1], {KA["A_x"]}')
e('v_lshrrev_b32 v1, 6, v0')
e('v_and_b32 v2, 63, v0')
e('v_readfirstlane_b32 s3, v1')
e('v_lshrrev_b32 v3, 4, v2')
e('v_and_b32 v4, 15, v2')
e(f's_mov_b32 s40, {f32hex(CSC)}')
e('s_mov_b32 s63, s3')
e('s_mov_b32 s62, 0')
e('s_cmp_ge_u32 s3, 8')
e('s_cbranch_scc1 L_C')

e(f's_load_dwordx4 s[52:55], s[0:1], {KA["A_k"]}')
e('s_waitcnt lgkmcnt(0)')
srd(S_WS, 46, WS_USED); srd(S_DBG, 44, 256)
srd(16, 52, 33554432); srd(20, 54, 33554432)
e('s_lshl_b32 s32, s2, 17')
e('s_lshl_b32 s33, s3, 14')
e('s_add_u32 s32, s32, s33')
e('v_lshlrev_b32 v5, 8, v3')
e('v_lshl_add_u32 v5, v4, 4, v5')
e('v_add_u32 v5, s32, v5')
e('s_mov_b32 s44, 0'); e('s_mov_b32 s45, 4096'); e('s_mov_b32 s46, 8192'); e('s_mov_b32 s47, 12288')
KB = 64
def kload(i, srdn):
    if NOA: return
    e(f'buffer_load_dwordx4 v[{KB+4*i}:{KB+4*i+3}], v5, s[{srdn}:{srdn+3}], s{44+i//4} offen offset:{(i%4)*1024} nt')
e('s_cmp_lg_u32 s3, 0')
e('s_cbranch_scc1 L_A_noinit')
e('v_lshlrev_b32 v6, 2, v2')
e('v_mov_b32 v7, 0')
e('ds_write_b32 v6, v7')
e('s_waitcnt lgkmcnt(0)')
lab('L_A_noinit')
e('s_barrier')
if QLW:
    Lq = uid('qlw')
    e('v_mov_b32 v6, 28')
    lab(Lq)
    e('ds_read_b32 v7, v6'); e('s_waitcnt lgkmcnt(0)'); e('v_readfirstlane_b32 s32, v7'); e('s_nop 0')
    e('s_cmp_ge_u32 s32, 8'); e(f's_cbranch_scc1 {Lq}_d'); spin_guard(); e('s_sleep 1'); e(f's_branch {Lq}')
    lab(Lq + '_d')
for i in range(16):
    if i >= KDEPTH: e(f's_waitcnt vmcnt({KDEPTH-1})')
    kload(i, 16)
TS()
get_tag(6)
lds_wait(LF_Q, 6, 7)
TS()
e(f'v_lshlrev_b32 v10, 4, v4')
e(f'ds_read_b128 v[48:51], v10 offset:{L_QA}')
e(f'ds_read_b128 v[52:55], v10 offset:{L_QA+256}')
for k in range(32): e(f'v_mov_b32 v{16+k}, 0')
e('s_waitcnt vmcnt(0) lgkmcnt(0)')
for i in range(16):
    for j in range(4):
        for hq in range(2):
            e(f'v_dot2c_f32_bf16 v{16+2*i+hq}, v{KB+4*i+j}, v{48+4*hq+j}')
for i in range(VDEPTH): kload(i, 20)
TS()
e('s_nop 3')
row_reduce([16+k for k in range(32)])
for hq in range(2):
    e(f'v_max_f32 v{56+hq}, v{16+hq}, v{18+hq}')
    for i in range(2, 16):
        e(f'v_max_f32 v{56+hq}, v{56+hq}, v{16+2*i+hq}')
xrow_reduce([56, 57], [58, 59], 'max')
for hq in range(2):
    e(f'v_mul_f32 v{56+hq}, s40, v{56+hq}')
for i in range(16):
    for hq in range(2):
        e(f'v_fma_f32 v{16+2*i+hq}, v{16+2*i+hq}, s40, -v{56+hq}')
for k in range(32): e(f'v_exp_f32 v{16+k}, v{16+k}')
e('s_nop 0')
for hq in range(2):
    e(f'v_add_f32 v{58+hq}, v{16+hq}, v{18+hq}')
    for i in range(2, 16):
        e(f'v_add_f32 v{58+hq}, v{58+hq}, v{16+2*i+hq}')
xrow_reduce([58, 59], [60, 61], 'add')
AC = 48
e('v_mov_b32 v10, v56'); e('v_mov_b32 v11, v58'); e('v_mov_b32 v12, v57'); e('v_mov_b32 v13, v59')
for k in range(16): e(f'v_mov_b32 v{AC+k}, 0')
for i in range(16):
    nissued = min(16, i + VDEPTH)
    e(f's_waitcnt vmcnt({nissued - i - 1})')
    for j in range(4):
        unpack(14, 15, KB+4*i+j)
        for hq in range(2):
            e(f'v_fmac_f32 v{AC+hq*8+2*j}, v{16+2*i+hq}, v14')
            e(f'v_fmac_f32 v{AC+hq*8+2*j+1}, v{16+2*i+hq}, v15')
    if i + VDEPTH < 16: kload(i + VDEPTH, 20)
TS()
xrow_reduce([AC+k for k in range(16)], [64+k for k in range(16)], 'add')
e('s_lshl_b32 s37, s3, 10')
e('v_lshlrev_b32 v7, 5, v4')
e('v_add_u32 v7, s37, v7')
e('s_lshl_b32 s37, s3, 4')
e('v_mov_b32 v6, s37')
e('s_mov_b64 exec, 0xffff')
e(f'ds_write_b128 v7, v[{AC}:{AC+3}] offset:{L_AO}')
e(f'ds_write_b128 v7, v[{AC+4}:{AC+7}] offset:{L_AO+16}')
e(f'ds_write_b128 v7, v[{AC+8}:{AC+11}] offset:{L_AO+512}')
e(f'ds_write_b128 v7, v[{AC+12}:{AC+15}] offset:{L_AO+528}')
e(f'ds_write_b128 v6, v[10:13] offset:{L_AML}')
e('s_mov_b64 exec, -1')
last_arriver(C_A, 8, 6, 7, 'L_A_done')
e('v_lshrrev_b32 v6, 5, v2')
e('v_lshlrev_b32 v7, 3, v6')
for s in range(8):
    e(f'ds_read_b64 v[{64+2*s}:{65+2*s}], v7 offset:{L_AML+s*16}')
e('v_lshlrev_b32 v9, 4, v2')
for s in range(8):
    e(f'ds_read_b128 v[{20+4*s}:{23+4*s}], v9 offset:{L_AO+s*1024}')
e('s_waitcnt lgkmcnt(0)')
e('v_max_f32 v12, v64, v66')
for s in range(2, 8): e(f'v_max_f32 v12, v12, v{64+2*s}')
for s in range(8): e(f'v_sub_f32 v{64+2*s}, v{64+2*s}, v12')
for s in range(8): e(f'v_exp_f32 v{64+2*s}, v{64+2*s}')
e('v_mov_b32 v13, 0')
for k in range(4): e(f'v_mov_b32 v{16+k}, 0')
for s in range(8):
    e(f'v_fmac_f32 v13, v{64+2*s}, v{65+2*s}')
    for k in range(4): e(f'v_fmac_f32 v{16+k}, v{64+2*s}, v{20+4*s+k}')
e(f'v_mov_b32 v24, v16'); e(f'v_mov_b32 v25, s{STAG}'); e('v_mov_b32 v26, v17'); e(f'v_mov_b32 v27, s{STAG}')
e(f'v_mov_b32 v28, v18'); e(f'v_mov_b32 v29, s{STAG}'); e('v_mov_b32 v30, v19'); e(f'v_mov_b32 v31, s{STAG}')
e('s_lshl_b32 s34, s2, 11')
e(f's_add_u32 s34, s34, {AP}')
e('v_lshlrev_b32 v9, 5, v2')
e(f'buffer_store_dwordx4 v[24:27], v9, {WSR}, s34 offen sc1')
e(f'buffer_store_dwordx4 v[28:31], v9, {WSR}, s34 offen offset:16 sc1')
e('s_nop 1')
e('v_mov_b32 v24, v12'); e('v_mov_b32 v26, v13')
e('s_lshl_b32 s34, s2, 5')
e(f's_add_u32 s34, s34, {AML}')
e('v_lshlrev_b32 v7, 4, v6')
e('v_and_b32 v6, 31, v2')
e('v_cmp_eq_u32 vcc, 0, v6')
e('s_and_saveexec_b64 s[36:37], vcc')
e(f'buffer_store_dwordx4 v[24:27], v7, {WSR}, s34 offen sc1')
e('s_mov_b64 exec, s[36:37]')
set_flag(FLG_AP, 2, 6)
lab('L_A_done')
TS()
e('s_sub_u32 s61, s2, 128')
e('s_cmp_lt_u32 s61, 32')
e('s_cbranch_scc1 L_A_tail')
ts_dump()
e('s_endpgm')
nA = ts_n[0]

lab('L_C')
ts_n[0] = 1
e('s_setprio 2')
e(f's_load_dwordx4 s[84:87], s[0:1], {KA["A_wq"]}')
e(f's_load_dwordx8 s[88:95], s[0:1], {KA["B_ckv"]}')
e(f's_load_dwordx4 s[96:99], s[0:1], {KA["B_wo"]}')
e(f's_load_dwordx2 s[100:101], s[0:1], {KA["out"]}')
assert not TSTAMP or True
e('s_sub_u32 s3, s3, 8')
e('s_waitcnt lgkmcnt(0)')
srd(S_WS, 46, WS_USED); srd(S_DBG, 44, 256); srd(S_X, 48, 2304)
e('s_lshr_b32 s32, s2, 7')
e('s_cmp_eq_u32 s32, 0')
e('s_cselect_b32 s50, s84, s90')
e('s_cselect_b32 s51, s85, s91')
srd(16, 50, 4718592)
srd(20, 92, 4194304)
srd(24, 88, 8388608)
e('s_or_b32 s32, s2, s3')
e('s_cmp_lg_u32 s32, 0')
e('s_cbranch_scc1 L_C_notag')
e('s_memrealtime s[60:61]')
e('s_waitcnt lgkmcnt(0)')
e('s_or_b32 s60, s60, 1')
e('v_mov_b32 v6, 0')
e('v_mov_b32 v7, s60')
e('s_mov_b64 exec, 1')
e(f'buffer_store_dword v7, v6, s[{S_DBG}:{S_DBG+3}], 0 offen sc1')
e('s_mov_b64 exec, -1')
lab('L_C_notag')
e('s_and_b32 s33, s2, 3')
e('s_mul_i32 s33, s33, 144')
e('s_mul_i32 s34, s3, 18')
e('s_add_u32 s33, s33, s34')
e('v_lshrrev_b32 v5, 5, v2')
e('v_add_u32 v5, s33, v5')
e('v_lshlrev_b32 v7, 1, v5')
e('s_bfe_u32 s35, s2, 0x50002')
e('s_lshl_b32 s35, s35, 8')
e('v_lshlrev_b32 v6, 13, v5')
e('v_and_b32 v8, 31, v2')
e('v_lshl_add_u32 v6, v8, 3, v6')
e('v_add_u32 v6, s35, v6')
e('s_mov_b32 s36, 0')
for i in range(9):
    e(f'buffer_load_dwordx2 v[{16+2*i}:{17+2*i}], v6, s[16:19], s36 offen nt')
    if i < 8: e('s_add_u32 s36, s36, 16384')
for i in range(9):
    for b in range(2):
        e(f'buffer_load_ushort v{40+2*i+b}, v7, s[{S_X}:{S_X+3}], 0 offen offset:{i*4+b*1152}')
e('s_lshr_b32 s42, s2, 3')
e('s_and_b32 s43, s2, 7')
e('s_lshl_b32 s33, s43, 6')
e('s_lshl_b32 s34, s3, 3')
e('s_add_u32 s33, s33, s34')
e('v_add_u32 v9, s33, v3')
e('v_lshlrev_b32 v10, 13, v9')
e('s_lshl_b32 s34, s42, 8')
e('v_lshl_add_u32 v10, v4, 4, v10')
e('v_add_u32 v10, s34, v10')
e('s_mov_b32 s36, 32768')
e('buffer_load_dwordx4 v[64:67], v10, s[20:23], 0 offen nt')
e('buffer_load_dwordx4 v[68:71], v10, s[20:23], s36 offen nt')
e('s_barrier')
e('s_cmp_lg_u32 s3, 0')
e('s_cbranch_scc1 L_C_nt')
master_get_tag(12, 13)
lab('L_C_nt')
e('s_waitcnt vmcnt(2)')
if QLW:
    e('v_mov_b32 v12, 28'); e('v_mov_b32 v13, 1'); e('s_mov_b64 exec, 1'); e('ds_add_u32 v12, v13'); e('s_mov_b64 exec, -1')
for k in range(18): e(f'v_lshlrev_b32 v{40+k}, 16, v{40+k}')
for k in range(8): e(f'v_mov_b32 v{72+k}, 0')
for i in range(9):
    for j in range(2):
        unpack(12, 13, 16+2*i+j)
        for b in range(2):
            e(f'v_fmac_f32 v{72+4*b+2*j}, v{40+2*i+b}, v12')
            e(f'v_fmac_f32 v{72+4*b+2*j+1}, v{40+2*i+b}, v13')
e('s_lshl_b32 s33, s3, 1')
e('v_lshrrev_b32 v12, 5, v2')
e('v_add_u32 v12, s33, v12')
e('v_lshlrev_b32 v12, 10, v12')
e('v_lshl_add_u32 v12, v8, 4, v12')
e(f'v_add_u32 v12, {L_RED}, v12')
e('ds_write_b128 v12, v[72:75]')
e('ds_write_b128 v12, v[76:79] offset:512')
TS()
get_tag(13)
last_arriver(C_Q, 8, 12, 13, 'L_C_qdone')
e('v_lshlrev_b32 v12, 4, v2')
e(f'v_add_u32 v13, {L_RED}, v12')
for q in range(2):
    for s in range(8):
        e(f'ds_read_b128 v[{16+4*s}:{19+4*s}], v13 offset:{(q*8+s)*1024}')
    e('s_waitcnt lgkmcnt(0)')
    if q == 0:
        for k in range(4): e(f'v_mov_b32 v{48+k}, v{16+k}')
        rng = range(1, 8)
    else: rng = range(8)
    for s in rng:
        for k in range(4): e(f'v_add_f32 v{48+k}, v{48+k}, v{16+4*s+k}')
def store4tagged(src, vaddr, soff, tmp):
    e(f'v_mov_b32 v{tmp}, v{src}'); e(f'v_mov_b32 v{tmp+1}, s{STAG}'); e(f'v_mov_b32 v{tmp+2}, v{src+1}'); e(f'v_mov_b32 v{tmp+3}, s{STAG}')
    e(f'v_mov_b32 v{tmp+4}, v{src+2}'); e(f'v_mov_b32 v{tmp+5}, s{STAG}'); e(f'v_mov_b32 v{tmp+6}, v{src+3}'); e(f'v_mov_b32 v{tmp+7}, s{STAG}')
    e(f'buffer_store_dwordx4 v[{tmp}:{tmp+3}], v{vaddr}, {WSR}, s{soff} offen sc1')
    e(f'buffer_store_dwordx4 v[{tmp+4}:{tmp+7}], v{vaddr}, {WSR}, s{soff} offen offset:16 sc1')
e('s_lshl_b32 s34, s2, 11')
e(f's_add_u32 s34, s34, {QP}')
e('v_lshlrev_b32 v12, 5, v2')
store4tagged(48, 12, 34, 16)
lab('L_C_qdone')
e('s_cmp_lg_u32 s3, 0')
e('s_cbranch_scc1 L_C_w1')
e('s_bfe_u32 s35, s2, 0x40003')
e('s_lshr_b32 s36, s2, 7')
e('s_lshl_b32 s34, s35, 14')
e('s_lshl_b32 s37, s36, 10')
e('s_add_u32 s34, s34, s37')
e(f's_add_u32 s34, s34, {QP}')
e('v_lshrrev_b32 v12, 5, v2')
e('v_lshlrev_b32 v12, 13, v12')
e('v_and_b32 v13, 31, v2')
e('v_lshl_add_u32 v12, v13, 5, v12')
e('s_add_u32 s35, s42, 32')
e('s_lshl_b32 s35, s35, 13')
e(f's_add_u32 s35, s35, {QP}')
e('v_lshlrev_b32 v15, 5, v2')
e('s_add_u32 s36, s34, 4096')
e('s_add_u32 s37, s35, 4096')
def loads():
    for kq in range(4):
        for hf in range(2):
            r = 16 + (kq*2+hf)*4
            e(f'buffer_load_dwordx4 v[{r}:{r+3}], v12, {WSR}, s{34 if kq<2 else 36} offen offset:{(kq%2)*2048+hf*16} sc1')
    for kq in range(4):
        for hf in range(2):
            r = 72 + (kq*2+hf)*4
            e(f'buffer_load_dwordx4 v[{r}:{r+3}], v15, {WSR}, s{35 if kq<2 else 37} offen offset:{(kq%2)*2048+hf*16} sc1')
tagged_loop(loads, [16+4*k+1 for k in range(8)] + [16+4*k+3 for k in range(8)] + [72+4*k+1 for k in range(8)] + [72+4*k+3 for k in range(8)], 48, 49)
for base, dst in ((16, 48), (72, 52)):
    for hf in range(2):
        for p in range(2):
            d = dst + hf*2 + p
            e(f'v_add_f32 v{d}, v{base+(0*2+hf)*4+2*p}, v{base+(1*2+hf)*4+2*p}')
            e(f'v_add_f32 v{d}, v{d}, v{base+(2*2+hf)*4+2*p}')
            e(f'v_add_f32 v{d}, v{d}, v{base+(3*2+hf)*4+2*p}')
e('v_cvt_pk_bf16_f32 v32, v48, v49')
e('v_cvt_pk_bf16_f32 v33, v50, v51')
e('v_lshlrev_b32 v12, 3, v2')
e(f'ds_write_b64 v12, v[32:33] offset:{L_QA}')
e('v_cvt_pk_bf16_f32 v20, v52, v53')
e('v_cvt_pk_bf16_f32 v21, v54, v55')
unpack(16, 17, 20); unpack(18, 19, 21)
e('v_lshlrev_b32 v12, 4, v2')
e(f'ds_write_b128 v12, v[16:19] offset:{L_QB}')
lds_set(LF_Q, 12, 13)
lab('L_C_w1')
lds_wait(LF_Q, 12, 13)
TS()
e('v_lshlrev_b32 v13, 5, v4')
e(f'ds_read_b128 v[32:35], v13 offset:{L_QB}')
e(f'ds_read_b128 v[36:39], v13 offset:{L_QB+16}')
e(f'ds_read_b128 v[40:43], v13 offset:{L_QB+512}')
e(f'ds_read_b128 v[44:47], v13 offset:{L_QB+528}')
for k in range(4): e(f'v_mov_b32 v{48+k}, 0')
e('s_waitcnt lgkmcnt(0)')
for i in range(2):
    for j in range(4):
        unpack(12, 13, 64+4*i+j)
        for b in range(2):
            e(f'v_fmac_f32 v{48+2*i+b}, v{32+8*b+2*j}, v12')
            e(f'v_fmac_f32 v{48+2*i+b}, v{32+8*b+2*j+1}, v13')
e('s_nop 1')
row_reduce([48, 49, 50, 51])
e('v_cmp_eq_u32 vcc, 1, v4'); e('s_nop 1'); e('v_cndmask_b32 v48, v48, v49, vcc')
e('v_cmp_eq_u32 vcc, 2, v4'); e('s_nop 1'); e('v_cndmask_b32 v48, v48, v50, vcc')
e('v_cmp_eq_u32 vcc, 3, v4'); e('s_nop 1'); e('v_cndmask_b32 v48, v48, v51, vcc')
e('v_cvt_pk_bf16_f32 v48, v48, v48')
e('v_and_b32 v12, 1, v4')
e('v_lshlrev_b32 v12, 7, v12')
e('v_lshrrev_b32 v13, 1, v4')
e('v_lshl_add_u32 v13, v13, 2, v3')
e('s_lshl_b32 s34, s3, 3')
e('v_add_u32 v13, s34, v13')
e('v_lshl_add_u32 v12, v13, 1, v12')
e('s_mov_b32 exec_lo, 0x000f000f'); e('s_mov_b32 exec_hi, 0x000f000f')
e(f'ds_write_b16 v12, v48 offset:{L_UO}')
e('s_mov_b64 exec, -1')
srd(20, 94, 4194304)
e('s_mov_b32 s36, 32768')
e('buffer_load_dwordx4 v[64:67], v10, s[20:23], 0 offen nt')
e('buffer_load_dwordx4 v[68:71], v10, s[20:23], s36 offen nt')
last_arriver(C_U, 8, 12, 13, 'L_C_udone')
e('v_lshlrev_b32 v12, 3, v2')
e(f'ds_read_b64 v[16:17], v12 offset:{L_UO}')
e('v_lshrrev_b32 v13, 4, v2')
e('v_lshlrev_b32 v13, 16, v13')
e('v_lshl_add_u32 v12, v4, 4, v13')
e('s_lshl_b32 s34, s42, 11')
e('s_lshl_b32 s35, s43, 8')
e('s_add_u32 s34, s34, s35')
e(f's_add_u32 s34, s34, {QABS}')
e('s_waitcnt lgkmcnt(0)')
e('v_mov_b32 v18, v17'); e(f'v_mov_b32 v17, s{STAG}'); e(f'v_mov_b32 v19, s{STAG}')
e('s_mov_b32 exec_lo, -1'); e('s_mov_b32 exec_hi, 0')
e(f'buffer_store_dwordx4 v[16:19], v12, {WSR}, s34 offen sc1')
e('s_mov_b64 exec, -1')
set_flag(FLG_U, 2, 12)
lab('L_C_udone')
e('s_cmp_ge_u32 s2, 128')
e('s_cbranch_scc1 L_C_nockv')
e('s_lshl_b32 s33, s2, 16')
e('s_lshl_b32 s34, s3, 13')
e('s_add_u32 s33, s33, s34')
e('v_lshlrev_b32 v11, 4, v2')
e('s_mul_i32 s34, s3, %d' % (8*RS))
e(f's_add_u32 s34, s34, {L_CKV}')
for i in range(8):
    e('s_mov_b32 m0, s34')
    e('s_nop 0')
    e('buffer_load_dwordx4 v11, s[24:27], s33 offen nt lds')
    if i < 7:
        e('s_add_u32 s33, s33, 1024'); e(f's_add_u32 s34, s34, {RS}')
lab('L_C_nockv')
TS()
e('s_cmp_ge_u32 s2, 128')
e('s_cbranch_scc1 L_C_noB')
e('s_cmp_lg_u32 s3, 0')
e('s_cbranch_scc1 L_C_w2')
def em():
    e(f's_mov_b32 s34, {FLG_U}')
poll_flags(em, 256, 12, 16)
lds_set(LF_U, 12, 13)
lab('L_C_w2')
lds_wait(LF_U, 12, 13)
e('s_lshr_b32 s33, s2, 6')
e('s_lshl_b32 s34, s33, 16')
e('s_lshl_b32 s35, s3, 13')
e('s_add_u32 s34, s34, s35')
e(f's_add_u32 s34, s34, {QABS}')
e('s_add_u32 s35, s34, 4096')
e('v_lshlrev_b32 v12, 4, v2')
def loads():
    for k in range(8):
        e(f'buffer_load_dwordx4 v[{16+4*k}:{19+4*k}], v12, {WSR}, s{34 if k<4 else 35} offen offset:{(k%4)*1024} sc1')
tagged_loop(loads, [16+4*k+1 for k in range(8)] + [16+4*k+3 for k in range(8)], 48, 49)
e(f's_mul_i32 s35, s3, {4*QS}')
e(f's_add_u32 s35, s35, {L_QABS}')
e('v_lshlrev_b32 v13, 3, v2')
e('v_add_u32 v13, s35, v13')
for k in range(8):
    e(f'v_mov_b32 v{16+4*k+1}, v{16+4*k+2}')
for k in range(8):
    e(f'ds_write_b64 v13, v[{16+4*k}:{17+4*k}] offset:{(k//2)*QS+(k%2)*512}')
cbar(0, 12, 13)
e('s_lshr_b32 s35, s3, 2')
e('s_and_b32 s36, s3, 3')
e('s_lshl_b32 s37, s36, 4')
e('v_add_u32 v12, s37, v4')
e(f'v_mul_u32_u24 v12, {RS}, v12')
e('v_lshl_add_u32 v12, v3, 4, v12')
e(f'v_add_u32 v12, {L_CKV}, v12')
e('s_lshl_b32 s37, s35, 4')
e('v_add_u32 v13, s37, v4')
e(f'v_mul_u32_u24 v13, {QS}, v13')
e('v_lshl_add_u32 v13, v3, 4, v13')
e(f'v_add_u32 v13, {L_QABS}, v13')
for k in range(4): e(f'v_mov_b32 v{24+k}, 0')
for half in range(2):
    for q in range(8):
        ks = half*8+q
        e(f'ds_read_b128 v[{28+4*q}:{31+4*q}], v12 offset:{ks*64}')
        e(f'ds_read_b128 v[{72+4*q}:{75+4*q}], v13 offset:{ks*64}')
    e('s_waitcnt lgkmcnt(0)')
    for q in range(8):
        e(f'v_mfma_f32_16x16x32_bf16 v[24:27], v[{28+4*q}:{31+4*q}], v[{72+4*q}:{75+4*q}], v[24:27]')
    e('s_nop 3')
e('s_nop 8')
e('s_lshl_b32 s37, s35, 12')
e('s_lshl_b32 s34, s36, 6')
e('s_add_u32 s37, s37, s34')
e('v_lshlrev_b32 v12, 8, v4')
e('v_lshl_add_u32 v12, v3, 4, v12')
e('v_add_u32 v12, s37, v12')
e(f'v_add_u32 v12, {L_S}, v12')
e('ds_write_b128 v12, v[24:27]')
cbar(1, 12, 13)
e('s_lshl_b32 s37, s3, 2')
e('v_add_u32 v12, s37, v3')
e('v_lshlrev_b32 v13, 8, v12')
e('v_lshl_add_u32 v13, v4, 4, v13')
e(f'v_add_u32 v13, {L_S}, v13')
e('ds_read_b128 v[16:19], v13')
e('s_waitcnt lgkmcnt(0)')
e('v_max_f32 v20, v16, v17')
e('v_max3_f32 v20, v20, v18, v19')
e('s_nop 1')
row_reduce([20], 'max')
e('v_mul_f32 v20, s40, v20')
for k in range(4): e(f'v_fma_f32 v{16+k}, v{16+k}, s40, -v20')
for k in range(4): e(f'v_exp_f32 v{16+k}, v{16+k}')
e('s_nop 0')
e('v_add_f32 v21, v16, v17')
e('v_add_f32 v22, v18, v19')
e('v_add_f32 v21, v21, v22')
e('v_cvt_pk_bf16_f32 v22, v16, v17')
e('v_cvt_pk_bf16_f32 v23, v18, v19')
row_reduce([21], 'add')
e('v_mul_u32_u24 v13, 144, v12')
e('v_lshl_add_u32 v13, v4, 3, v13')
e(f'v_add_u32 v13, {L_P}, v13')
e('ds_write_b64 v13, v[22:23]')
e('v_mov_b32 v24, v20'); e(f'v_mov_b32 v25, s{STAG}'); e('v_mov_b32 v26, v21'); e(f'v_mov_b32 v27, s{STAG}')
e('v_lshlrev_b32 v13, 4, v12')
e('s_lshl_b32 s34, s2, 9')
e(f's_add_u32 s34, s34, {BML}')
e('s_mov_b32 exec_lo, 0x00010001'); e('s_mov_b32 exec_hi, 0x00010001')
e(f'buffer_store_dwordx4 v[24:27], v13, {WSR}, s34 offen sc1')
e('s_mov_b64 exec, -1')
cbar(2, 12, 13)
e('v_mul_u32_u24 v12, 144, v4')
e('v_lshl_add_u32 v12, v3, 4, v12')
e(f'v_add_u32 v12, {L_P}, v12')
for hh in range(2):
    for ks in range(2):
        r = 16 + (hh*2+ks)*4
        e(f'ds_read_b128 v[{r}:{r+3}], v12 offset:{hh*16*144+ks*64}')
e('v_lshrrev_b32 v13, 2, v4')
e('v_lshl_add_u32 v13, v3, 3, v13')
e(f'v_mul_u32_u24 v13, {RS}, v13')
e('v_and_b32 v12, 3, v4')
e('v_lshl_add_u32 v13, v12, 3, v13')
e('s_lshl_b32 s37, s3, 7')
e(f's_add_u32 s37, s37, {L_CKV}')
e('v_add_u32 v13, s37, v13')
for ct in range(4):
    for ks in range(2):
        for t in range(2):
            r = 32 + ((ct*2+ks)*2+t)*2
            e(f'ds_read_b64_tr_b16 v[{r}:{r+1}], v13 offset:{(ks*32+t*4)*RS + ct*32}')
for k in range(32): e(f'v_mov_b32 v{72+k}, 0')
e('s_waitcnt lgkmcnt(0)')
for ct in range(4):
    for hh in range(2):
        for ks in range(2):
            a = 32 + (ct*2+ks)*4
            bq = 16 + (hh*2+ks)*4
            d = 72 + (ct*2+hh)*4
            e(f'v_mfma_f32_16x16x32_bf16 v[{d}:{d+3}], v[{a}:{a+3}], v[{bq}:{bq+3}], v[{d}:{d+3}]')
e('s_nop 15')
TS()
for k in range(8):
    d = 72 + 4*k
    e(f'v_cvt_pk_bf16_f32 v{d}, v{d}, v{d+1}')
    e(f'v_cvt_pk_bf16_f32 v{d+2}, v{d+2}, v{d+3}')
    e(f'v_mov_b32 v{d+1}, s{STAG}')
    e(f'v_mov_b32 v{d+3}, s{STAG}')
e('s_lshl_b32 s37, s3, 13')
e(f's_add_u32 s37, s37, {L_BPS}')
e('v_lshlrev_b32 v12, 8, v4')
e('v_lshl_add_u32 v12, v3, 4, v12')
e('v_add_u32 v12, s37, v12')
for ct in range(4):
    for hh in range(2):
        d = 72 + (ct*2+hh)*4
        e(f'ds_write_b128 v12, v[{d}:{d+3}] offset:{hh*4096+ct*64}')
e('v_lshlrev_b32 v13, 4, v2')
e('v_add_u32 v13, s37, v13')
e('s_waitcnt lgkmcnt(0)')
for k in range(8):
    e(f'ds_read_b128 v[{16+4*k}:{19+4*k}], v13 offset:{k*1024}')
e('s_lshl_b32 s34, s2, 16')
e('s_lshl_b32 s37, s3, 8')
e('s_add_u32 s34, s34, s37')
e(f's_add_u32 s34, s34, {BP}')
e('v_lshlrev_b32 v12, 11, v3')
e('v_lshl_add_u32 v12, v4, 4, v12')
e('s_waitcnt lgkmcnt(0)')
for k in range(8):
    e(f'buffer_store_dwordx4 v[{16+4*k}:{19+4*k}], v12, {WSR}, s34 offen sc1')
    if k < 7: e('s_add_u32 s34, s34, 8192')
e('v_mov_b32 v12, %d' % (C_BAR + 4*6)); e('v_mov_b32 v13, 1')
e('s_mov_b64 exec, 1'); e('ds_add_u32 v12, v13'); e('s_mov_b64 exec, -1')
last_arriver(C_BP, 8, 12, 13, 'L_C_bdone')
set_flag(FLG_BP, 2, 12)
lab('L_C_bdone')
TS()
lab('L_C_noB')
def task_decode(st):
    e(f's_cmp_ge_u32 s{st}, 144')
    e('s_cselect_b32 s58, 1, 0')
    e('s_mul_i32 s59, s58, 144')
    e(f's_sub_u32 s59, s{st}, s59')
    e('s_and_b32 s60, s59, 15')
    e('s_lshr_b32 s59, s59, 4')
def o_prefetch(st, reg):
    task_decode(st)
    e('s_cmp_eq_u32 s58, 0')
    e('s_cselect_b32 s54, s86, s96')
    e('s_cselect_b32 s55, s87, s97')
    srd(24, 54, 4718592)
    e('s_lshl_b32 s33, s60, 8')
    e('s_lshl_b32 s34, s3, 5')
    e('s_add_u32 s33, s33, s34')
    e('v_lshrrev_b32 v12, 3, v2')
    e('v_add_u32 v12, s33, v12')
    e('s_movk_i32 s34, 1152')
    e('v_mul_lo_u32 v12, v12, s34')
    e('v_and_b32 v13, 7, v2')
    e('v_lshl_add_u32 v12, v13, 4, v12')
    e('s_lshl_b32 s34, s59, 7')
    for i in range(4):
        e(f'buffer_load_dwordx4 v[{reg+4*i}:{reg+4*i+3}], v12, s[24:27], s34 offen nt')
        if i < 3: e(f's_add_u32 s34, s34, {8*1152}')
o_prefetch(2, 96)
e('s_cmp_lg_u32 s3, 0')
e('s_cbranch_scc1 L_C_w3')
def em():
    e(f's_mov_b32 s34, {FLG_BP}')
poll_flags(em, 128, 12, 16)
lds_set(LF_BP, 12, 13)
lab('L_C_w3')
lds_wait(LF_BP, 12, 13)
e('s_lshr_b32 s33, s3, 2')
e('s_and_b32 s35, s3, 3')
e('s_lshl_b32 s34, s33, 6')
e('v_add_u32 v12, s34, v2')
e('v_lshlrev_b32 v12, 5, v12')
e('v_add_u32 v12, s42, v12')
e('v_lshlrev_b32 v12, 4, v12')
e('s_lshl_b32 s34, s35, 4')
e('v_add_u32 v15, s34, v3')
e('s_lshl_b32 s34, s33, 6')
e('v_add_u32 v13, s34, v15')
e('v_lshlrev_b32 v13, 5, v13')
e('v_add_u32 v13, s42, v13')
e('v_lshlrev_b32 v13, 11, v13')
e('v_lshl_add_u32 v13, v4, 4, v13')
e('s_lshl_b32 s34, s43, 8')
e(f's_add_u32 s34, s34, {BP}')
e(f's_mov_b32 s35, {BML}')
e(f's_add_u32 s36, s34, {4*32*2048}')
e(f's_add_u32 s37, s36, {4*32*2048}')
e(f's_add_u32 s38, s37, {4*32*2048}')
def loads():
    e(f'buffer_load_dwordx4 v[40:43], v12, {WSR}, s35 offen sc1')
    for i in range(4):
        e(f'buffer_load_dwordx4 v[{16+4*i}:{19+4*i}], v13, {WSR}, s{[34,36,37,38][i]} offen sc1')
tagged_loop(loads, [41, 43] + [16+4*k+1 for k in range(4)] + [16+4*k+3 for k in range(4)], 48, 49)
TS()
e('v_mov_b32 v44, v40')
e('s_nop 1')
row_reduce([44], 'max')
xrow_reduce([44], [45], 'max')
e('v_sub_f32 v40, v40, v44')
e('v_exp_f32 v40, v40')
e('s_nop 0')
e('v_mul_f32 v44, v40, v42')
e('s_nop 1')
row_reduce([44], 'add')
xrow_reduce([44], [45], 'add')
e('v_rcp_f32 v44, v44')
e('s_nop 0')
e('v_mul_f32 v40, v40, v44')
for i in range(4):
    e(f'v_add_u32 v45, {4*i}, v15')
    e('v_lshlrev_b32 v45, 2, v45')
    e(f'ds_bpermute_b32 v{48+i}, v45, v40')
e('s_waitcnt lgkmcnt(0)')
for k in range(4): e(f'v_mov_b32 v{52+k}, 0')
for i in range(4):
    for p in range(2):
        unpack(12, 13, 16+4*i+2*p)
        e(f'v_fmac_f32 v{52+2*p}, v{48+i}, v12')
        e(f'v_fmac_f32 v{53+2*p}, v{48+i}, v13')
xrow_reduce([52, 53, 54, 55], [56, 57, 58, 59], 'add')
VR = L_CKV
e('s_cmp_ge_u32 s2, 128')
e('s_cbranch_scc1 L_C_vr')
Lq = uid('ckw')
e('v_mov_b32 v12, %d' % (C_BAR + 4*6))
lab(Lq)
e('ds_read_b32 v13, v12'); e('s_waitcnt lgkmcnt(0)'); e('v_readfirstlane_b32 s32, v13'); e('s_nop 0')
e('s_cmp_ge_u32 s32, 8'); e(f's_cbranch_scc1 L_C_vr'); spin_guard(); e(f's_branch {Lq}')
lab('L_C_vr')
e('s_lshl_b32 s34, s3, 8')
e(f's_add_u32 s34, s34, {VR}')
e('v_lshlrev_b32 v12, 4, v4')
e('v_add_u32 v12, s34, v12')
e('ds_write_b128 v12, v[52:55]')
cbar(3, 12, 13)
e('s_lshl_b32 s34, s3, 3')
e('v_add_u32 v12, s34, v3')
e('v_lshlrev_b32 v12, 2, v12')
e(f'v_add_u32 v12, {VR}, v12')
for i in range(2):
    for b in range(2):
        for q in range(4):
            e(f'ds_read_b32 v{16+(i*2+b)*4+q}, v12 offset:{(b*4+q)*256+i*16}')
e('s_waitcnt lgkmcnt(0)')
for ib in range(4):
    for q in range(1, 4): e(f'v_add_f32 v{16+ib*4}, v{16+ib*4}, v{16+ib*4+q}')
for k in range(16): e(f'v_mov_b32 v{32+k}, 0')
for i in range(2):
    for j in range(4):
        unpack(12, 13, 64+4*i+j)
        for b in range(2):
            e(f'v_fmac_f32 v{32+8*b+2*j}, v{16+(i*2+b)*4}, v12')
            e(f'v_fmac_f32 v{32+8*b+2*j+1}, v{16+(i*2+b)*4}, v13')
xrow_reduce([32+k for k in range(16)], [48+k for k in range(16)], 'add')
e('s_lshl_b32 s34, s3, 10')
e(f's_add_u32 s34, s34, {VR+4096}')
e('v_lshlrev_b32 v12, 5, v4')
e('v_add_u32 v12, s34, v12')
e('s_mov_b64 exec, 0xffff')
e('ds_write_b128 v12, v[32:35]')
e('ds_write_b128 v12, v[36:39] offset:16')
e('ds_write_b128 v12, v[40:43] offset:512')
e('ds_write_b128 v12, v[44:47] offset:528')
e('s_mov_b64 exec, -1')
last_arriver(C_V, 8, 12, 13, 'L_C_vdone')
e('v_lshlrev_b32 v12, 4, v2')
e(f'v_add_u32 v13, {VR+4096}, v12')
for s in range(8): e(f'ds_read_b128 v[{16+4*s}:{19+4*s}], v13 offset:{s*1024}')
e('s_waitcnt lgkmcnt(0)')
for s in range(1, 8):
    for k in range(4): e(f'v_add_f32 v{16+k}, v{16+k}, v{16+4*s+k}')
e('s_lshl_b32 s34, s2, 11')
e(f's_add_u32 s34, s34, {CTXP}')
e('v_lshlrev_b32 v12, 5, v2')
store4tagged(16, 12, 34, 48)
set_flag(FLG_V, 2, 12)
lab('L_C_vdone')
TS()
def o_stage(st, reg, cnt, bark, LOV, LRD, lf):
    task_decode(st)
    Lb, Lj, Ld = uid('ob'), uid('oj'), uid('od')
    Lw, Lw2, Lp = uid('ow'), uid('ow2'), uid('op')
    e('s_cmp_lg_u32 s3, 0')
    e(f's_cbranch_scc1 {Lw}')
    e('s_cmp_eq_u32 s58, 0')
    e(f's_cbranch_scc0 {Lp}')
    for b in range(2):
        def em():
            e(f's_add_u32 s34, s60, {b*16}')
            e('s_lshl_b32 s34, s34, 10')
            e(f's_add_u32 s34, s34, {FLG_AP}')
        poll_flags(em, 8, 12, 16)
    e(f's_branch {Lw2}')
    lab(Lp)
    def em():
        e('s_lshl_b32 s34, s60, 11')
        e(f's_add_u32 s34, s34, {FLG_V}')
    poll_flags(em, 16, 12, 16)
    lab(Lw2)
    lds_set(lf, 12, 13)
    lab(Lw)
    lds_wait(lf, 12, 13)
    e('s_cmp_eq_u32 s58, 0')
    e(f's_cbranch_scc0 {Lb}')
    e('s_lshr_b32 s33, s3, 2')
    e('s_and_b32 s35, s3, 3')
    e('s_lshl_b32 s34, s33, 4')
    e('s_add_u32 s34, s34, s60')
    e('s_lshl_b32 s36, s34, 14')
    e('s_lshl_b32 s37, s35, 9')
    e('s_add_u32 s36, s36, s37')
    e(f's_add_u32 s36, s36, {AP}')
    e('v_lshlrev_b32 v12, 3, v2')
    e('s_add_u32 s37, s36, 4096'); e('s_add_u32 s38, s36, 8192'); e('s_add_u32 s32, s36, 12288')
    e('s_lshl_b32 s34, s34, 8')
    e('s_lshr_b32 s33, s35, 1')
    e('s_lshl_b32 s33, s33, 4')
    e('s_add_u32 s34, s34, s33')
    e(f's_add_u32 s34, s34, {AML}')
    e('v_mov_b32 v13, 0')
    def loads():
        for c in range(8):
            e(f'buffer_load_dwordx2 v[{16+2*c}:{17+2*c}], v12, {WSR}, s{[36,37,38,32][c//2]} offen offset:{(c%2)*2048} sc1')
        for c in range(8):
            e(f'buffer_load_dwordx4 v[{64+4*c - 32 if False else 32+4*c}:{35+4*c}], v13, {WSR}, s34 offen offset:{c*32} sc1')
    tagged_loop(loads, [17+2*c for c in range(8)] + [33+4*c for c in range(8)] + [35+4*c for c in range(8)], 14, 15)
    e('v_max_f32 v13, v32, v36')
    for c in range(2, 8): e(f'v_max_f32 v13, v13, v{32+4*c}')
    for c in range(8): e(f'v_sub_f32 v{32+4*c}, v{32+4*c}, v13')
    for c in range(8): e(f'v_exp_f32 v{32+4*c}, v{32+4*c}')
    e('v_mov_b32 v14, 0'); e('v_mov_b32 v15, 0')
    for c in range(8):
        e(f'v_fmac_f32 v14, v{32+4*c}, v{34+4*c}')
        e(f'v_fmac_f32 v15, v{32+4*c}, v{16+2*c}')
    e('v_rcp_f32 v14, v14')
    e('s_nop 0')
    e('v_mul_f32 v15, v15, v14')
    e(f's_branch {Lj}')
    lab(Lb)
    e('s_lshr_b32 s33, s3, 2')
    e('s_and_b32 s35, s3, 3')
    e('s_lshr_b32 s37, s35, 1')
    e('s_lshl_b32 s34, s60, 1')
    e('s_add_u32 s34, s34, s37')
    e('s_lshl_b32 s36, s34, 14')
    e('s_lshl_b32 s37, s33, 10')
    e('s_add_u32 s36, s36, s37')
    e('s_and_b32 s37, s35, 1')
    e('s_lshl_b32 s37, s37, 9')
    e('s_add_u32 s36, s36, s37')
    e(f's_add_u32 s36, s36, {CTXP}')
    e('v_lshlrev_b32 v12, 3, v2')
    e('s_add_u32 s37, s36, 4096'); e('s_add_u32 s38, s36, 8192'); e('s_add_u32 s32, s36, 12288')
    def loads():
        for c in range(8):
            e(f'buffer_load_dwordx2 v[{16+2*c}:{17+2*c}], v12, {WSR}, s{[36,37,38,32][c//2]} offen offset:{(c%2)*2048} sc1')
    tagged_loop(loads, [17+2*c for c in range(8)], 14, 15)
    e('v_mov_b32 v15, v16')
    for c in range(1, 8): e(f'v_add_f32 v15, v15, v{16+2*c}')
    lab(Lj)
    e('v_cvt_pk_bf16_f32 v15, v15, v15')
    e('v_lshlrev_b32 v15, 16, v15')
    e('s_lshl_b32 s34, s3, 8')
    e(f's_add_u32 s34, s34, {LOV}')
    e('v_lshlrev_b32 v12, 2, v2')
    e('v_add_u32 v12, s34, v12')
    e('ds_write_b32 v12, v15')
    cbar(bark, 12, 13)
    e('s_lshl_b32 s34, s3, 5')
    e('v_lshrrev_b32 v12, 3, v2')
    e('v_add_u32 v12, s34, v12')
    e('v_lshlrev_b32 v12, 2, v12')
    e(f'v_add_u32 v12, {LOV}, v12')
    for i in range(4):
        for b in range(2):
            e(f'ds_read_b32 v{16+2*i+b}, v12 offset:{b*1024+i*32}')
    for k in range(16): e(f'v_mov_b32 v{32+k}, 0')
    e('s_waitcnt vmcnt(0) lgkmcnt(0)')
    for i in range(4):
        for j in range(4):
            unpack(12, 13, reg+4*i+j)
            for b in range(2):
                e(f'v_fmac_f32 v{32+8*b+2*j}, v{16+2*i+b}, v12')
                e(f'v_fmac_f32 v{32+8*b+2*j+1}, v{16+2*i+b}, v13')
    for k in range(16): e(f'v_add_f32_dpp v{32+k}, v{32+k}, v{32+k} row_ror:8 row_mask:0xf bank_mask:0xf')
    xrow_reduce([32+k for k in range(16)], [48+k for k in range(16)], 'add')
    e('s_lshl_b32 s34, s3, 9')
    e(f's_add_u32 s34, s34, {LRD}')
    e('v_lshlrev_b32 v12, 5, v2')
    e('v_add_u32 v12, s34, v12')
    e('s_mov_b64 exec, 0xff')
    e('ds_write_b128 v12, v[32:35]')
    e('ds_write_b128 v12, v[36:39] offset:16')
    e('ds_write_b128 v12, v[40:43] offset:256')
    e('ds_write_b128 v12, v[44:47] offset:272')
    e('s_mov_b64 exec, -1')
    last_arriver(cnt, 8, 12, 13, Ld)
    e('v_lshlrev_b32 v12, 3, v2')
    e(f'v_add_u32 v13, {LRD}, v12')
    for s in range(8): e(f'ds_read_b64 v[{16+2*s}:{17+2*s}], v13 offset:{s*512}')
    e('s_waitcnt lgkmcnt(0)')
    for s in range(1, 8):
        e(f'v_add_f32 v16, v16, v{16+2*s}'); e(f'v_add_f32 v17, v17, v{17+2*s}')
    e('v_mov_b32 v18, v17'); e(f'v_mov_b32 v17, s{STAG}'); e(f'v_mov_b32 v19, s{STAG}')
    e(f's_lshl_b32 s34, s{st}, 10')
    e(f's_add_u32 s34, s34, {OUTP}')
    e('v_lshlrev_b32 v12, 4, v2')
    e(f'buffer_store_dwordx4 v[16:19], v12, {WSR}, s34 offen sc1')
    set_flag(FLG_O, st, 12)
    lab(Ld)
OSC = L_CKV + 16384
o_stage(2, 96, C_O, 4, L_OV, OSC, LF_O0)
TS()
e('s_sub_u32 s61, s2, 240')
e('s_cmp_lt_u32 s61, 9')
e('s_cbranch_scc0 L_C_end')
e('s_cmp_ge_u32 s3, 6')
e('s_cbranch_scc0 L_C_end')
e('s_cmp_eq_u32 s3, 6')
e('s_cbranch_scc1 L_F_nog')
srd(20, 98, 1152); srd(24, 100, 2304)
e('v_lshlrev_b32 v12, 1, v2')
for k in range(9):
    e(f'buffer_load_ushort v{16+k}, v12, s[20:23], 0 offen offset:{k*128}')
    e(f'buffer_load_ushort v{32+k}, v12, s[{S_X}:{S_X+3}], 0 offen offset:{k*128}')
    e(f'buffer_load_ushort v{48+k}, v12, s[{S_X}:{S_X+3}], 0 offen offset:{k*128+1152}')
e('s_waitcnt vmcnt(0)')
e('v_mov_b32 v60, 0'); e('v_mov_b32 v61, 0')
for k in range(9):
    e(f'v_lshlrev_b32 v{16+k}, 16, v{16+k}')
    e(f'v_lshlrev_b32 v{32+k}, 16, v{32+k}')
    e(f'v_lshlrev_b32 v{48+k}, 16, v{48+k}')
    e(f'v_mul_f32 v{32+k}, v{32+k}, v{16+k}')
    e(f'v_mul_f32 v{48+k}, v{48+k}, v{16+k}')
    e(f'v_cvt_pk_bf16_f32 v62, v{32+k}, v{48+k}')
    unpack(63, 64, 62)
    e('v_add_f32 v60, v60, v63'); e('v_add_f32 v61, v61, v64')
e('s_nop 1')
row_reduce([60, 61], 'add')
xrow_reduce([60, 61], [62, 63], 'add')
e('v_cvt_pk_bf16_f32 v62, v60, v61')
unpack(60, 61, 62)
e(f's_mov_b32 s33, {f32hex(-1.4426950408889634)}')
e('v_mul_f32 v60, s33, v60'); e('v_mul_f32 v61, s33, v61')
e('v_exp_f32 v60, v60'); e('v_exp_f32 v61, v61'); e('s_nop 0')
e('v_add_f32 v60, 1.0, v60'); e('v_add_f32 v61, 1.0, v61')
e('v_rcp_f32 v60, v60'); e('v_rcp_f32 v61, v61'); e('s_nop 0')
e('v_cvt_pk_bf16_f32 v62, v60, v61')
unpack(60, 61, 62)
e('v_cmp_le_u32 vcc, 32, v2'); e('s_nop 1')
e('v_cndmask_b32 v60, v60, v61, vcc')
lab('L_F_nog')
e('s_sub_u32 s58, s3, 6')
e('s_mul_i32 s59, s58, 144')
e('s_lshl_b32 s60, s61, 4')
e('s_add_u32 s59, s59, s60')
def em():
    e('s_lshl_b32 s34, s59, 7')
    e(f's_add_u32 s34, s34, {FLG_O}')
poll_flags(em, 16, 12, 16)
e('v_lshlrev_b32 v12, 4, v2')
e('s_lshl_b32 s34, s59, 10')
e(f's_add_u32 s34, s34, {OUTP}')
for q in range(1, 4): e(f's_add_u32 s{34+q}, s34, {q*4096}')
def loads():
    for t in range(16):
        e(f'buffer_load_dwordx4 v[{64+4*t}:{67+4*t}], v12, {WSR}, s{34+t//4} offen offset:{(t%4)*1024} sc1')
tagged_loop(loads, [64+4*t+1 for t in range(16)] + [64+4*t+3 for t in range(16)], 14, 15)
e('v_mov_b32 v18, v64'); e('v_mov_b32 v19, v66')
for t in range(1, 16):
    e(f'v_add_f32 v18, v18, v{64+4*t}'); e(f'v_add_f32 v19, v19, v{66+4*t}')
e('v_lshlrev_b32 v12, 3, v2')
e('s_cmp_eq_u32 s3, 7')
e('s_cbranch_scc1 L_F_fin')
e(f'ds_write_b64 v12, v[18:19] offset:{L_QB}')
lds_set(5, 12, 13)
e('s_branch L_C_end')
lab('L_F_fin')
lds_wait(5, 13, 14)
e(f'ds_read_b64 v[16:17], v12 offset:{L_QB}')
e('s_waitcnt lgkmcnt(0)')
e('v_cvt_pk_bf16_f32 v62, v16, v17'); unpack(16, 17, 62)
e('v_cvt_pk_bf16_f32 v62, v18, v19'); unpack(18, 19, 62)
e('v_sub_f32 v61, 1.0, v60')
e('v_cvt_pk_bf16_f32 v62, v61, v61'); e('v_lshlrev_b32 v61, 16, v62')
e('v_mul_f32 v16, v60, v16'); e('v_mul_f32 v17, v60, v17')
e('v_cvt_pk_bf16_f32 v62, v16, v17'); unpack(16, 17, 62)
e('v_mul_f32 v18, v61, v18'); e('v_mul_f32 v19, v61, v19')
e('v_cvt_pk_bf16_f32 v62, v18, v19'); unpack(18, 19, 62)
e('v_add_f32 v16, v16, v18'); e('v_add_f32 v17, v17, v19')
e('v_cvt_pk_bf16_f32 v62, v16, v17')
e('v_lshrrev_b32 v12, 5, v2')
e('v_mul_u32_u24 v12, 1152, v12')
e('v_and_b32 v13, 31, v2')
e('v_lshl_add_u32 v12, v13, 2, v12')
e('s_lshl_b32 s34, s61, 7')
e('buffer_store_dword v62, v12, s[24:27], s34 offen')
lab('L_C_end')
TS()
ts_dump()
e('s_endpgm')
lab('L_A_tail')
e(f's_load_dwordx2 s[86:87], s[0:1], {KA["A_wo"]}')
e(f's_load_dwordx2 s[96:97], s[0:1], {KA["B_wo"]}')
e('s_add_u32 s61, s61, 256')
e('s_waitcnt lgkmcnt(0)')
e('s_setprio 2')
o_prefetch(61, 112)
o_stage(61, 112, C_O2, 5, L_OV+2048, OSC+4096, LF_O1)
e('s_endpgm')
lab('L_bail')
e('s_endpgm')
lab('L_exit')
e('s_endpgm')
out += ['.section .rodata,"a"', '.p2align 6', f'.amdhsa_kernel {NAME}', '  .amdhsa_next_free_vgpr 128', '  .amdhsa_next_free_sgpr 102',
  '  .amdhsa_accum_offset 128', '  .amdhsa_group_segment_fixed_size 0', '  .amdhsa_kernarg_size 120', '  .amdhsa_user_sgpr_count 2',
  '  .amdhsa_user_sgpr_kernarg_segment_ptr 1', '  .amdhsa_system_sgpr_workgroup_id_x 1', '.end_amdhsa_kernel']
open(sys.argv[1], 'w').write(HEADER + f'; @launch grid=(256,1,1) block=(1024,1,1) lds={(L_END+255)//256*256}\n' + '\n'.join(out) + '\n')
print('LDS', L_END, 'stamps', nA, ts_n[0])
```
